```python
import torch

def _softmax(x, axis=-1):
    return torch.softmax(x, dim=axis)
def _gelu(x):
    return torch.nn.functional.gelu(x, approximate="tanh")
def _silu(x):
    return torch.nn.functional.silu(x)
def _sigmoid(x):
    return torch.sigmoid(x)
def _layernorm(x, axis=-1, eps=1e-5):
    m = x.mean(dim=axis, keepdim=True)
    v = x.var(dim=axis, keepdim=True, unbiased=False)
    return (x - m) / torch.sqrt(v + eps)
def _scatter_add(tgt, idx, src, axis=0):
    return tgt.clone().index_add_(axis, idx, src)
def _segment_sum(src, seg, n):
    out = torch.zeros((n,) + src.shape[1:], dtype=src.dtype)
    return out.index_add_(0, seg, src)
def _pad(x, pw):
    flat = tuple(v for pair in reversed(pw) for v in pair)
    return torch.nn.functional.pad(x, flat)

kernel_name = 'parallel_sum__mha_block__glu_gated_geglu__prompt'

def setup_inputs():

    _w = (lambda a: (lambda t: t.to(torch.bfloat16) if t.is_floating_point() else t)(torch.as_tensor(a)))
    def _A_setup():
        B, S, D, H = 1, 2048, 576, 32
        return {
            "x": _w((lambda *s: torch.randn(*s, dtype=torch.bfloat16) * 0.05)(B, S, D)),
            "wqkv": _w((lambda *s: torch.randn(*s, dtype=torch.bfloat16) * 0.05)(D, 3 * D)),
            "wo": _w((lambda *s: torch.randn(*s, dtype=torch.bfloat16) * 0.05)(D, D)),
        }
    _A_in = _A_setup()

    def _B_setup():
        B, S, Dm, Df = 1, 2048, 576, 4608
        return {
            "x": _w((lambda *s: torch.randn(*s, dtype=torch.bfloat16) * 0.05)(B, S, Dm)),
            "w_gate": _w((lambda *s: torch.randn(*s, dtype=torch.bfloat16) * 0.8)(Dm, Df) * (Dm ** -0.5)),
            "w_up": _w((lambda *s: torch.randn(*s, dtype=torch.bfloat16) * 0.8)(Dm, Df) * (Dm ** -0.5)),
            "w_down": _w((lambda *s: torch.randn(*s, dtype=torch.bfloat16) * 0.8)(Df, Dm) * (Df ** -0.5)),
        }
    _B_in = _B_setup()

    return {
        "A_x": _A_in["x"],
        "A_wqkv": _A_in["wqkv"],
        "A_wo": _A_in["wo"],
        "B_x": _B_in["x"],
        "B_w_gate": _B_in["w_gate"],
        "B_w_up": _B_in["w_up"],
        "B_w_down": _B_in["w_down"],
    }

def reference(A_x, A_wqkv, A_wo, B_x, B_w_gate, B_w_up, B_w_down):
    def _A_ref(x, wqkv, wo):
        B, S, D = x.shape
        H = 32
        Dh = D // H
        qkv = (lambda x, *d: x.permute(*d))((x @ wqkv).reshape(B, S, 3, H, Dh), 2, 0, 3, 1, 4)
        q, k, v = qkv[0], qkv[1], qkv[2]
        scores = torch.einsum("bhqd,bhkd->bhqk", q, k) * (Dh ** -0.5)
        p = _softmax(scores, axis=-1)
        o = torch.einsum("bhqk,bhkd->bhqd", p, v)
        return (lambda x, *d: x.permute(*d))(o, 0, 2, 1, 3).reshape(B, S, D) @ wo

    def _B_ref(x, w_gate, w_up, w_down):
        g = torch.einsum("bsd,df->bsf", x, w_gate)
        u = torch.einsum("bsd,df->bsf", x, w_up)
        h = _gelu(g) * u
        return torch.einsum("bsf,fd->bsd", h, w_down)

    x = A_x
    xn = _layernorm(x, axis=-1)
    return x + _A_ref(xn, A_wqkv, A_wo) + _B_ref(xn, B_w_gate, B_w_up, B_w_down)
```

```python
import re

TRANS = ("v_exp_f32", "v_log_f32", "v_rcp_f32", "v_rsq_f32", "v_sqrt_f32", "v_sin_f32", "v_cos_f32", "v_rcp_iflag_f32")
PASSES = {
    "v_mfma_f32_16x16x32_bf16": 4, "v_mfma_f32_16x16x16_bf16": 4,
    "v_mfma_f32_32x32x16_bf16": 8, "v_mfma_f32_32x32x8_bf16": 8,
    "v_mfma_f32_32x32x4_2b_bf16": 16, "v_smfmac_f32_32x32x32_bf16": 8,
}
D2USE = {2: 5, 4: 8, 8: 12, 16: 20}
D2COV = {2: 4, 4: 6, 8: 10, 16: 18}
CWAR = {2: 1, 4: 3, 8: 7, 16: 15}

_reg = re.compile(r"^(-|abs\()?([vas])(\d+)\)?$")
_rng = re.compile(r"^(-|abs\()?([vas])\[(\d+):(\d+)\]\)?$")

def regs_of(tok):
    tok = tok.strip()
    m = _reg.match(tok)
    if m: return [(m.group(2), int(m.group(3)))]
    m = _rng.match(tok)
    if m: return [(m.group(2), i) for i in range(int(m.group(3)), int(m.group(4)) + 1)]
    if tok == "vcc": return [("s", "vcc")]
    if tok == "exec": return [("s", "exec")]
    if tok == "m0": return [("s", "m0")]
    return []

class Ins:
    __slots__ = ("text", "op", "kind", "rd", "wr", "tag", "ops", "mods", "srcC", "dst", "ab", "note")
    def __init__(self, text, tag=None):
        self.text = text; self.tag = tag; self.note = None
        t = text.split(";")[0].strip()
        self.srcC = []; self.dst = []; self.ab = []
        if t.endswith(":") or t.startswith("."):
            self.op = t; self.kind = "label"; self.rd = []; self.wr = []; self.ops = []; self.mods = ""; return
        parts = t.split(None, 1)
        op = parts[0]; rest = parts[1] if len(parts) > 1 else ""
        for suf in ("_e32", "_e64", "_dpp", "_sdwa"):
            if op.endswith(suf): op = op[:-len(suf)]
        self.op = op
        toks = [x.strip() for x in rest.split(",")] if rest else []
        mods = ""
        if "quad_perm" in rest or "op_sel" in rest or "neg_" in rest:
            m = re.search(r"\s(quad_perm|op_sel|neg_lo|neg_hi)", rest)
            mods = rest[m.start():]; toks = [x.strip() for x in rest[:m.start()].split(",")]
        if toks:
            last = toks[-1].split(None, 1)
            if len(last) > 1: toks[-1] = last[0]; mods = last[1] + " " + mods
        self.ops = toks; self.mods = mods
        R = [regs_of(x) for x in toks]
        flat = lambda L: [r for l in L for r in l]
        rd, wr = [], []
        if op.startswith("v_mfma") or op.startswith("v_smfmac"):
            self.kind = "mfma"; wr = R[0]; self.dst = R[0]
            if op.startswith("v_smfmac"):
                self.srcC = R[0]; self.ab = R[1] + R[2] + R[3]
            else:
                self.srcC = R[3]; self.ab = R[1] + R[2]
            rd = self.ab + self.srcC
        elif op.startswith("v_"):
            self.kind = "valu"
            if op.startswith("v_cmp"):
                wr = R[0]; rd = flat(R[1:])
                if op.startswith("v_cmpx"): wr = wr + [("s", "exec")]
            elif op in ("v_add_co_u32", "v_sub_co_u32", "v_addc_co_u32", "v_subb_co_u32", "v_mad_u64_u32"):
                wr = R[0] + R[1]; rd = flat(R[2:])
            elif op.startswith("v_permlane") and op.endswith("swap_b32"):
                wr = R[0] + R[1]; rd = R[0] + R[1]
            elif op in ("v_fmac_f32", "v_dot2c_f32_bf16", "v_writelane_b32"):
                wr = R[0]; rd = flat(R)
            elif op == "v_nop": pass
            else:
                wr = R[0]; rd = flat(R[1:])
            if "row_" in mods or "quad_perm" in mods or "wave_" in mods:
                self.note = "dpp"
                if "bound_ctrl" not in mods or True: rd = rd + R[0]
        elif op.startswith("ds_"):
            self.kind = "ds"
            if op.startswith("ds_read") or op.startswith("ds_bpermute") or op.startswith("ds_permute") or op.startswith("ds_swizzle") or "_rtn" in op:
                wr = R[0]; rd = flat(R[1:])
            else:
                rd = flat(R)
        elif op.startswith("buffer_") or op.startswith("global_"):
            self.kind = "vmem"
            if op in ("buffer_wbl2", "buffer_inv"): pass
            elif "load" in op:
                if " lds" in (" " + mods): rd = flat(R) + [("s", "m0")]; self.note = "dma"
                else: wr = R[0]; rd = flat(R[1:])
            elif "atomic" in op:
                rd = flat(R)
                if "sc0" in mods: wr = R[0]
            else:
                rd = flat(R); self.note = "store"
        elif op.startswith("s_load") or op.startswith("s_memtime") or op.startswith("s_memrealtime") or op.startswith("s_buffer_load"):
            self.kind = "smem"; wr = R[0]; rd = flat(R[1:])
        elif op == "WAIT":
            self.kind = "pwait"
        elif op == "s_waitcnt": self.kind = "wait"
        elif op == "s_nop": self.kind = "nop"
        elif op == "s_barrier": self.kind = "barrier"
        elif op.startswith("s_cbranch") or op in ("s_branch", "s_endpgm", "s_setpc_b64"):
            self.kind = "branch"; rd = flat(R)
        elif op.startswith("s_"):
            self.kind = "salu"
            if op.startswith("s_cmp") or op in ("s_setprio", "s_sleep", "s_bitcmp0_b32", "s_bitcmp1_b32"): rd = flat(R)
            elif "saveexec" in op: wr = R[0] + [("s", "exec")]; rd = flat(R[1:]) + [("s", "exec")]
            elif op in ("s_addk_i32", "s_mulk_i32"): wr = R[0]; rd = R[0]
            else: wr = R[0]; rd = flat(R[1:])
        else:
            raise ValueError("unknown op: " + text)
        self.rd = rd; self.wr = wr

    @property
    def ws(self):
        if self.kind == "nop": return int(self.ops[0]) + 1
        if self.kind == "label": return 0
        return 1

class State:
    def __init__(self):
        self.vm = []
        self.lg = []
        self.hist = []
    def copy(self):
        s = State(); s.vm = list(self.vm); s.lg = list(self.lg); s.hist = list(self.hist); return s

def need_ws(prev, cur):
    n = 0
    pw = set(prev.wr); cr = set(cur.rd); cw = set(cur.wr)
    if prev.kind == "mfma":
        p = PASSES[prev.op]
        if cur.kind == "mfma":
            if pw & set(cur.ab): n = max(n, D2USE[p])
            if pw & set(cur.srcC):
                if prev.dst == cur.srcC and PASSES[cur.op] == p: n = max(n, 2 if p == 2 else 0)
                else: n = max(n, D2COV[p])
            elif pw & cw and not (prev.dst == cur.dst and PASSES[cur.op] == p):
                n = max(n, D2COV[p])
        elif cur.kind in ("valu", "ds", "vmem"):
            if pw & (cr | cw): n = max(n, D2USE[p])
        if cur.kind == "valu" and set(prev.srcC) & cw: n = max(n, CWAR[p])
    elif prev.kind == "valu":
        pv = {r for r in pw if r[0] != "s"}; ps = {r for r in pw if r[0] == "s"}
        isdot = prev.op.startswith("v_dot")
        if cur.kind == "mfma":
            if pv & cr: n = max(n, 3 if isdot else 2)
            if ("s", "exec") in ps: n = max(n, 4)
        if cur.kind == "valu":
            if prev.op in TRANS and pv & cr: n = max(n, 1)
            if cur.note == "dpp" and pv & cr: n = max(n, 2)
            if cur.note == "dpp" and ("s", "exec") in ps: n = max(n, 5)
            if cur.op.startswith("v_permlane") and pv & cr: n = max(n, 2)
            if cur.op in ("v_readlane_b32", "v_readfirstlane_b32") and pv & cr: n = max(n, 1)
            if ps & cr: n = max(n, 4 if cur.op in ("v_readlane_b32", "v_writelane_b32") else 2)
            if ("s", "exec") in ps and (cur.op in ("v_readlane_b32", "v_readfirstlane_b32", "v_writelane_b32") or cur.op.startswith("v_permlane")): n = max(n, 4)
            if isdot and pv & (cr | cw):
                if cur.op == prev.op:
                    ab = set(regs_of(cur.ops[1]) + regs_of(cur.ops[2]))
                    if pv & ab: n = max(n, 3)
                else: n = max(n, 3)
        if cur.kind in ("vmem", "ds"):
            if ps & cr and cur.kind == "vmem": n = max(n, 5)
            if isdot and pv & cr: n = max(n, 3)
        if cur.kind in ("salu", "branch", "smem") and ps & cr: n = max(n, 1)
        if cur.kind == "branch" and ((("s", "vcc") in ps and "vcc" in cur.op) or (("s", "exec") in ps and "exec" in cur.op)): n = max(n, 1)
    elif prev.kind == "salu":
        if ("s", "m0") in pw and cur.note == "dma": n = max(n, 1)
    elif prev.kind == "vmem" and prev.note == "store" and ("x4" in prev.op or "x3" in prev.op):
        data = set(regs_of(prev.ops[0] if prev.op.startswith("buffer") else prev.ops[1]))
        if data & cw: n = max(n, 2)
    return n

class Prog:
    def __init__(self):
        self.items = []
        self.auto = {"nop": 0, "wait": 0}
        self.log = []
    def __call__(self, text, tag=None):
        for line in text.strip().split("\n"):
            line = line.strip()
            if not line or line.startswith(";"): continue
            self.items.append(Ins(line, tag))
        return self
    def add(self, ins): self.items.append(ins)
    def extend(self, other): self.items.extend(other.items if isinstance(other, Prog) else other)

def _apply_wait(st, vm=None, lg=None):
    if vm is not None and len(st.vm) > vm: st.vm = st.vm[len(st.vm) - vm:] if vm else []
    if lg is not None:
        if any(x[2] for x in st.lg):
            if lg == 0: st.lg = []
        elif len(st.lg) > lg: st.lg = st.lg[len(st.lg) - lg:] if lg else []

def _wait_text(vm, lg):
    p = []
    if vm is not None: p.append(f"vmcnt({min(vm, 63)})")
    if lg is not None: p.append(f"lgkmcnt({min(lg, 15)})")
    return "s_waitcnt " + " ".join(p)

def _needed(st, ins):
    vm = lg = None
    if ins.kind == "pwait":
        for spec in ins.ops:
            c, tag = spec.split(":")
            q = st.vm if c == "vm" else st.lg
            idx = [i for i, x in enumerate(q) if x[1] == tag or tag == "*"]
            if idx:
                n = len(q) - 1 - idx[-1]
                if c == "lg" and any(x[2] for x in q): n = 0
                if c == "vm": vm = n if vm is None else min(vm, n)
                else: lg = n if lg is None else min(lg, n)
        return vm, lg
    touched = set(ins.rd) | set(ins.wr)
    for i, x in enumerate(st.vm):
        if touched & set(x[0]): vm = len(st.vm) - 1 - i
    for i, x in enumerate(st.lg):
        if touched & set(x[0]):
            lg = 0 if any(y[2] for y in st.lg) else len(st.lg) - 1 - i
    return vm, lg

def _step(st, ins, out, stats, forced=None, record=None):
    if ins.kind == "label":
        out.append(ins); return
    vm, lg = _needed(st, ins)
    if forced:
        if forced[0] is not None: vm = forced[0] if vm is None else min(vm, forced[0])
        if forced[1] is not None: lg = forced[1] if lg is None else min(lg, forced[1])
    if ins.kind == "pwait":
        if record is not None: record.append((vm, lg, 0))
        if vm is not None or lg is not None:
            if vm is not None: vm = min(vm, 63)
            if lg is not None: lg = min(lg, 15)
            w = Ins(_wait_text(vm, lg)); out.append(w); st.hist.append(w); _apply_wait(st, vm, lg)
        return
    if vm is not None or lg is not None:
        if vm is not None: vm = min(vm, 63)
        if lg is not None: lg = min(lg, 15)
        w = Ins(_wait_text(vm, lg) + " ; auto"); out.append(w); st.hist.append(w); _apply_wait(st, vm, lg)
        stats.append(("wait", ins.text))
    need = 0; dist = 0
    for p in reversed(st.hist):
        r = need_ws(p, ins) - dist
        if r > need: need = r
        dist += p.ws
        if dist > 24: break
    if forced: need = max(need, forced[2])
    if record is not None: record.append((vm, lg, need))
    if need > 0:
        stats.append(("nop", f"{need} before {ins.text}"))
        k = need
        while k > 0:
            j = min(k, 16); w = Ins(f"s_nop {j-1} ; auto"); out.append(w); st.hist.append(w); k -= j
    out.append(ins); st.hist.append(ins)
    if len(st.hist) > 64: st.hist = st.hist[-40:]
    if ins.kind == "wait":
        t = ins.text.split(";")[0]
        m = re.search(r"vmcnt\((\d+)\)", t); m2 = re.search(r"lgkmcnt\((\d+)\)", t)
        _apply_wait(st, int(m.group(1)) if m else None, int(m2.group(1)) if m2 else None)
    elif ins.kind == "vmem":
        st.vm.append((ins.wr, ins.tag))
        assert len(st.vm) <= 63, "vmcnt overflow at " + ins.text
    elif ins.kind == "ds": st.lg.append((ins.wr, ins.tag, False))
    elif ins.kind == "smem": st.lg.append((ins.wr, ins.tag, True))

class Loop:
    def __init__(self, body): self.body = body

def finalize(items, st=None, verbose=None):
    st = st or State(); out = []; stats = []
    for it in items:
        if isinstance(it, Loop):
            body = it.body.items if isinstance(it.body, Prog) else it.body
            forced = [None] * len(body)
            for rnd in range(6):
                s = st.copy(); changed = False
                for rep in range(3):
                    for i, ins in enumerate(body):
                        rec = []
                        _step(s, ins, [], [], forced[i], rec)
                        if rec and rec[0] != (forced[i] or (None, None, 0)):
                            forced[i] = rec[0]; changed = True
                if not changed: break
            else: raise RuntimeError("loop waits did not converge")
            s1 = st.copy()
            for i, ins in enumerate(body): _step(s1, ins, out, stats, forced[i])
            s2 = s1.copy()
            for i, ins in enumerate(body): _step(s2, ins, [], [], forced[i])
            if [x[0] for x in s1.vm] != [x[0] for x in s2.vm] and verbose: print("note: loop exit vm state differs 1 vs 2 iterations", len(s1.vm), len(s2.vm))
            st = s2
        else:
            _step(st, it, out, stats)
    if verbose:
        for k, t in stats: print(f"  [{verbose}] auto {k}: {t}")
    return out, st, stats

def text_of(out):
    return "\n".join((i.text if i.kind == "label" else "    " + i.text) for i in out) + "\n"
```

```python
from asmfw import *
from sched import *

def V(a, n=1): return f"v{a}" if n == 1 else f"v[{a}:{a+n-1}]"
def A(a, n=1): return f"a{a}" if n == 1 else f"a[{a}:{a+n-1}]"
def S(a, n=1): return f"s{a}" if n == 1 else f"s[{a}:{a+n-1}]"

WS_QK = 0
QK_SEC = 2359296; QK_PAIR = 147456; QK_T = 2304
WS_VT = 2 * QK_SEC
VT_HEAD = 81920; VT_T = 1280; VT_G = 320
WS_OM = WS_VT + 32 * VT_HEAD
WS_OT = WS_OM + 16 * 8 * 16 * 1024
WS_FL = WS_OT + 16 * 16 * 1024
WS_P = WS_FL + 256 * 1024
WS_END = WS_P + 16 * 4 * 36 * 16 * 1024
WS_TS = WS_END
assert WS_OM % 1024 == 0 and WS_P % 1024 == 0

sX, sWQ, sWG, sWU, sWD, sWS, sWH, sOUT, sWO, sDBG, sWQB, sWSB = 4, 8, 12, 16, 20, 24, 28, 32, 36, 40, 44, 48
sM, sS, sWV, sLW = 52, 53, 54, 55
sT0, sT1, sT2, sT3 = 56, 57, 58, 59
sSO = 60

SLOT = 36864
LDS_X = 4 * SLOT
LDS_BYTES = 163840

def srd(p, dst, src, nbytes):
    p(f"s_mov_b32 {S(dst)}, {S(src)}\ns_and_b32 {S(dst+1)}, {S(src+1)}, 0xffff\ns_mov_b32 {S(dst+2)}, {nbytes}\ns_mov_b32 {S(dst+3)}, 0x20000")

def prologue(p, exit_label):
    p(f"""
    s_cmp_ge_u32 s2, 256
    s_cbranch_scc1 {exit_label}
    s_load_dwordx8 s[64:71], s[0:1], 0
    s_load_dwordx8 s[72:79], s[0:1], 32
    s_load_dwordx4 s[80:83], s[0:1], 64
    v_lshrrev_b32 v1, 6, v0
    v_and_b32 v0, 63, v0
    s_and_b32 {S(sT0)}, s2, 7
    s_lshr_b32 {S(sT1)}, s2, 3
    v_readfirstlane_b32 {S(sWV)}, v1
    s_lshl_b32 {S(sT0)}, {S(sT0)}, 1
    s_and_b32 {S(sS)}, {S(sT1)}, 1
    s_add_u32 {S(sS)}, {S(sS)}, {S(sT0)}
    s_lshr_b32 {S(sM)}, {S(sT1)}, 1
    s_lshl_b32 {S(sLW)}, {S(sWV)}, 10
    s_waitcnt lgkmcnt(0)
    """)
    srd(p, sX, 64, 2359296)
    srd(p, sWQ, 66, 1990656)
    srd(p, sWO, 68, 663552)
    srd(p, sWG, 72, 5308416)
    srd(p, sWU, 74, 5308416)
    srd(p, sWD, 76, 5308416)
    srd(p, sOUT, 78, 2359296)
    srd(p, sDBG, 80, 256)
    srd(p, sWS, 82, 0x10000000)

def kdesc(name, nfv=512, acc=256):
    return f""".amdhsa_kernel {name}
  .amdhsa_next_free_vgpr {nfv}
  .amdhsa_next_free_sgpr 102
  .amdhsa_accum_offset {acc}
  .amdhsa_group_segment_fixed_size 0
  .amdhsa_kernarg_size 80
  .amdhsa_user_sgpr_count 2
  .amdhsa_user_sgpr_kernarg_segment_ptr 1
  .amdhsa_system_sgpr_workgroup_id_x 1
.end_amdhsa_kernel
"""

def stamp(p, idx, cfg):
    if cfg.get("stamps"):
        p(f"s_memtime s[{84+2*idx}:{85+2*idx}]")
```

```python
from common import *
import math, struct

def f32bits(x): return struct.unpack("<I", struct.pack("<f", x))[0]

vTR0, vTR1, vTRH, vDG, vDQ, vDH, vDD, vXW, vXR, vER0, vER1 = 1, 2, 3, 4, 5, 6, 7, 8, 9, 10, 11
vST = 12
vAF = 16
vXV = 40
vACC = 72
vH = 168
vGT = 240
NGT = 6
vTD = 246
vPS = 250
sQA, sQB, sF0, sFH, sD0, sDH = 61, 62, 63, 64, 65, 66
sSTA, sSTB = 68, 72
sSCA, sSCB = 76, 77
sC0, sC1, sISV, sXFIX, sPB = 78, 79, 80, 81, 82
sONE, sLO, sHI = 67, 83, 3

def xfrag(ks, tt):
    i = ks * 4 + tt
    return A(4 * i, 4) if i < 64 else V(vXV + 4 * (i - 64), 4)
def acc(st, a, tt): return vACC + 32 * st + 16 * a + 4 * tt

STAGES = [("A", 0, 0), ("A", 0, 1), ("B", 0, 0), ("B", 0, 1), ("H", 0, 0), ("H", 0, 1)]
for b in range(4): STAGES += [("G", b, 0), ("G", b, 1), ("U", b, 0), ("U", b, 1)]
STAGES += [("D", j, 0) for j in range(9)]

def dma_list(si):
    kind, b, kh = STAGES[si]; base = (si % 4) * SLOT; L = []
    for j in range(9):
        if kind == "A": L.append((sQA, (288 * kh + 32 * j) * 3456, base + 4096 * j, vDQ, sWQ, False))
        elif kind == "B": L.append((sQB, (288 * kh + 32 * j) * 3456, base + 4096 * j, vDQ, sWQB, False))
        elif kind == "G": L.append((sF0, (288 * kh + 32 * j) * 9216 + 128 * b, base + 4096 * j, vDG, sWG, False))
        elif kind == "U": L.append((sF0, (288 * kh + 32 * j) * 9216 + 128 * b, base + 4096 * j, vDG, sWU, False))
        elif kind == "H": L.append((sFH, (288 * kh + 32 * j) * 9216, base + 2048 * j, vDH, sWH, True))
        elif j < 8: L.append((sD0, 32 * j * 1152 + 128 * b, base + 4096 * j, vDD, sWD, False))
        else: L.append((sDH, 128 * b, base + 4096 * j, vDD, sWD, False))
    return L

def setup(p, cfg):
    p(f"""
    v_lshrrev_b32 v16, 3, v0
    v_and_b32 v17, 7, v0
    v_mul_u32_u24 v18, 1152, v16
    v_lshl_add_u32 v18, v17, 4, v18
    s_lshl_b32 {S(sT0)}, {S(sM)}, 2
    s_add_u32 {S(sT0)}, {S(sT0)}, {S(sWV)}
    s_mul_i32 {S(sT1)}, {S(sT0)}, {32*1152}
    """)
    for rg in range(4):
        if rg: p(f"s_add_u32 {S(sT1)}, {S(sT1)}, {8*1152}")
        for j in range(9):
            p(f"buffer_load_dwordx4 {V(40+36*rg+4*j,4)}, v18, {S(sX,4)}, {S(sT1)} offen offset:{128*j}", tag=f"x{rg}")
        if rg == cfg.get("dma_after_rg", 3): first_dmas(p)

def first_dmas(p):
    p(f"""
    s_and_b32 {S(sT2)}, {S(sWV)}, 1
    s_lshl_b32 {S(sT2)}, {S(sT2)}, 2
    v_and_b32 v19, 2, v16
    v_or_b32 v19, {S(sT2)}, v19
    v_xor_b32 v19, v19, v17
    v_lshlrev_b32 v19, 4, v19
    s_lshl_b32 {S(sT3)}, {S(sWV)}, 3
    v_add_u32 v20, {S(sT3)}, v16
    v_mul_u32_u24 v21, 3456, v20
    v_add_u32 {V(vDQ)}, v21, v19
    s_lshl_b32 {S(sQA)}, {S(sS)}, 7
    """)
    for si in (0, 1):
        for (sb, c, m0c, vo, sr, isH) in dma_list(si):
            p(f"s_add_u32 {S(sSO)}, {S(sb)}, {c}\ns_add_u32 m0, {S(sLW)}, {m0c}")
            p(f"buffer_load_dwordx4 {V(vo)}, {S(sr,4)}, {S(sSO)} offen lds", tag=f"st{si}")

def setup2(p, cfg):
    p(f"""
    v_mul_u32_u24 v21, 9216, v20
    v_add_u32 {V(vDG)}, v21, v19
    v_and_b32 v21, 6, v16
    v_xor_b32 v21, v21, v17
    v_mul_u32_u24 v22, 1152, v20
    v_lshl_add_u32 {V(vDD)}, v21, 4, v22
    v_lshrrev_b32 v21, 2, v0
    v_lshrrev_b32 v22, 5, v0
    v_lshlrev_b32 v22, 1, v22
    v_and_b32 v23, 3, v0
    v_xor_b32 v22, v22, v23
    s_and_b32 {S(sT2)}, {S(sWV)}, 1
    s_lshl_b32 {S(sT3)}, {S(sT2)}, 4
    v_add_u32 v21, {S(sT3)}, v21
    v_mul_u32_u24 v21, 9216, v21
    v_lshl_add_u32 {V(vDH)}, v22, 4, v21
    s_cmp_lt_u32 {S(sWV)}, 2
    s_cselect_b32 {S(sWH)}, {S(sWG)}, {S(sWU)}
    s_cselect_b32 {S(sWH+1)}, {S(sWG+1)}, {S(sWU+1)}
    s_mov_b32 {S(sWH+2)}, 5308416
    s_mov_b32 {S(sWH+3)}, 0x20000
    ; f offsets
    s_mul_i32 {S(sT0)}, {S(sS)}, 288
    s_and_b32 {S(sT1)}, {S(sS)}, 1
    s_lshl_b32 {S(sT3)}, {S(sT1)}, 5
    s_add_u32 {S(sF0)}, {S(sT0)}, {S(sT3)}
    s_xor_b32 {S(sT1)}, {S(sT1)}, 1
    s_lshl_b32 {S(sT1)}, {S(sT1)}, 8
    s_add_u32 {S(sFH)}, {S(sT0)}, {S(sT1)}
    s_mul_i32 {S(sD0)}, {S(sF0)}, 1152
    s_mul_i32 {S(sDH)}, {S(sFH)}, 1152
    s_lshl_b32 {S(sF0)}, {S(sF0)}, 1
    s_lshl_b32 {S(sFH)}, {S(sFH)}, 1
    s_cmp_lt_u32 {S(sS)}, 9
    s_cselect_b32 {S(sISV)}, 1, 0
    s_cselect_b32 {S(sT0)}, 18, 7
    s_add_u32 {S(sT0)}, {S(sT0)}, {S(sS)}
    s_lshl_b32 {S(sQB)}, {S(sT0)}, 7
    s_cmp_lt_u32 {S(sS)}, 11
    s_mov_b32 {S(sWQB)}, {S(sWQ)}
    s_mov_b32 {S(sWQB+1)}, {S(sWQ+1)}
    s_cselect_b32 {S(sWQB+2)}, 1990656, 0
    s_mov_b32 {S(sWQB+3)}, 0x20000
    s_mov_b32 {S(sWSB)}, {S(sWS)}
    s_mov_b32 {S(sWSB+1)}, {S(sWS+1)}
    s_cselect_b32 {S(sWSB+2)}, {WS_SIZE}, 0
    s_mov_b32 {S(sWSB+3)}, 0x20000
    ; lane decomposition for MFMA layouts: v21 = c (l&15), v22 = g (l>>4), v23 = r ((l>>2)&3), v24 = l&3
    v_and_b32 v21, 15, v0
    v_lshrrev_b32 v22, 4, v0
    v_bfe_u32 v23, v0, 2, 2
    v_and_b32 v24, 3, v0
    v_lshl_add_u32 v25, v22, 3, v23
    v_lshrrev_b32 v26, 1, v23
    v_and_b32 v27, 1, v22
    v_lshl_or_b32 v26, v27, 1, v26
    s_lshl_b32 {S(sT3)}, {S(sT2)}, 1
    v_xor_b32 v26, {S(sT3)}, v26
    v_lshlrev_b32 v28, 7, v25
    v_lshl_add_u32 v28, v24, 3, v28
    v_lshl_add_u32 {V(vTR0)}, v26, 5, v28
    v_xor_b32 {V(vTR1)}, 32, {V(vTR0)}
    v_xor_b32 v27, {S(sT2)}, v27
    v_lshlrev_b32 v28, 6, v25
    v_lshl_add_u32 v28, v24, 3, v28
    v_lshl_add_u32 {V(vTRH)}, v27, 5, v28
    s_lshr_b32 {S(sT0)}, {S(sWV)}, 1
    s_lshl_b32 {S(sT0)}, {S(sT0)}, 13
    s_add_u32 {S(sT0)}, {S(sT0)}, {LDS_X}
    s_lshl_b32 {S(sT1)}, {S(sT2)}, 3
    s_add_u32 {S(sT1)}, {S(sT1)}, {S(sT0)}
    v_lshl_add_u32 {V(vXW)}, v0, 4, {S(sT1)}
    s_lshl_b32 {S(sT1)}, {S(sT2)}, 12
    s_add_u32 {S(sT1)}, {S(sT1)}, {S(sT0)}
    v_lshl_add_u32 {V(vXR)}, v0, 4, {S(sT1)}
    s_mul_i32 {S(sXFIX)}, {S(sT2)}, 1016
    s_lshr_b32 {S(sT0)}, {S(sWV)}, 1
    s_mul_i32 {S(sT0)}, {S(sT0)}, {SLOT}
    s_add_u32 {S(sT0)}, {S(sT0)}, {2*SLOT}
    v_xor_b32 v26, v0, v22
    v_lshl_add_u32 {V(vER0)}, v26, 4, {S(sT0)}
    v_xor_b32 {V(vER1)}, 64, {V(vER0)}
    s_mul_i32 {S(sT0)}, {S(sWV)}, 18432
    s_add_u32 {S(sT0)}, {S(sT0)}, {2*SLOT}
    v_xor_b32 v26, v16, v17
    v_lshlrev_b32 v26, 4, v26
    v_lshl_add_u32 v26, v17, 8, v26
    v_add_u32 v29, {S(sT0)}, v26
    """)
    p(f"""
    s_cmp_lt_u32 {S(sS)}, 9
    s_cselect_b32 {S(sT0)}, 0, 9
    s_cselect_b32 {S(sT1)}, {WS_QK}, {WS_QK+QK_SEC}
    s_cselect_b32 {S(sSCA)}, {f32bits(18**-0.5*math.log2(math.e))}, 1.0
    s_mov_b32 {S(sSCB)}, 1.0
    s_sub_u32 {S(sT0)}, {S(sS)}, {S(sT0)}
    """)
    def qk_addr(dst, sblk, ssec):
        p(f"s_lshl_b32 {S(sT3)}, {S(sblk)}, 1\ns_add_u32 {S(sT3)}, {S(sT3)}, {S(sT2)}\ns_lshl_b32 {S(sT3)}, {S(sT3)}, 3")
        for a in (0, 1):
            p(f"""
            v_add_u32 v26, {S(sT3)}, v22
            v_add_u32 v26, {4*a}, v26
            v_mul_u32_u24 v27, 57, v26
            v_lshrrev_b32 v27, 9, v27
            v_mul_u32_u24 v28, {QK_PAIR - 9*256}, v27
            v_lshl_add_u32 v28, v26, 8, v28
            v_lshl_add_u32 v28, v21, 3, v28
            v_add_u32 {V(dst+a)}, {S(ssec)}, v28
            """)
    qk_addr(vST, sT0, sT1)
    p(f"""
    s_lshl_b32 {S(sT0)}, {S(sM)}, 2
    s_and_b32 {S(sT1)}, {S(sWV)}, 2
    s_add_u32 {S(sPB)}, {S(sT0)}, {S(sT1)}
    s_mul_i32 {S(sSTA)}, {S(sPB)}, {QK_T}
    s_add_u32 {S(sSTA+1)}, {S(sSTA)}, 128
    s_add_u32 {S(sSTA+2)}, {S(sSTA)}, {QK_T}
    s_add_u32 {S(sSTA+3)}, {S(sSTA)}, {QK_T+128}
    s_cmp_eq_u32 {S(sISV)}, 1
    s_cbranch_scc1 L_adrV
    s_sub_u32 {S(sT0)}, {S(sS)}, 2
    s_min_u32 {S(sT0)}, {S(sT0)}, 8
    s_mov_b32 {S(sT1)}, {WS_QK+QK_SEC}
    """)
    qk_addr(vST + 2, sT0, sT1)
    p(f"""
    s_mov_b32 {S(sSTB)}, {S(sSTA)}
    s_mov_b32 {S(sSTB+1)}, {S(sSTA+1)}
    s_mov_b32 {S(sSTB+2)}, {S(sSTA+2)}
    s_mov_b32 {S(sSTB+3)}, {S(sSTA+3)}
    s_branch L_adrD
    L_adrV:
    s_lshl_b32 {S(sT3)}, {S(sS)}, 1
    s_add_u32 {S(sT3)}, {S(sT3)}, {S(sT2)}
    s_lshl_b32 {S(sT3)}, {S(sT3)}, 5
    """)
    for a in (0, 1):
        p(f"""
        v_add_u32 v26, {S(sT3)}, v21
        v_add_u32 v26, {16*a}, v26
        v_mul_u32_u24 v27, 3641, v26
        v_lshrrev_b32 v27, 16, v27
        v_mul_u32_u24 v28, {VT_HEAD - 18*16}, v27
        v_lshl_add_u32 v28, v26, 4, v28
        v_mul_u32_u24 v27, {VT_G}, v22
        v_add_u32 v28, v27, v28
        v_add_u32 {V(vST+2+a)}, {WS_VT}, v28
        """)
    p(f"""
    s_mul_i32 {S(sSTB)}, {S(sPB)}, {VT_T}
    s_add_u32 {S(sSTB+1)}, {S(sSTB)}, 8
    s_add_u32 {S(sSTB+2)}, {S(sSTB)}, {VT_T}
    s_add_u32 {S(sSTB+3)}, {S(sSTB)}, {VT_T+8}
    L_adrD:
    s_nop 1
    v_bfe_u32 v26, v0, 2, 1
    v_mul_u32_u24 v26, {VT_HEAD}, v26
    v_mul_u32_u24 v27, {VT_G}, v24
    v_add_u32 v26, v26, v27
    v_cmp_gt_u32 vcc, 8, v0
    v_mov_b32 v27, 0x7fff0000
    v_cndmask_b32 v26, v27, v26, vcc
    s_lshl_b32 {S(sT0)}, {S(sM)}, 2
    s_add_u32 {S(sT0)}, {S(sT0)}, {S(sWV)}
    s_mul_i32 {S(sPB)}, {S(sT0)}, {36*16*1024}
    s_mul_i32 {S(sT0)}, {S(sT0)}, {VT_T}
    s_mul_i32 {S(sT1)}, {S(sS)}, {2*VT_HEAD}
    s_add_u32 {S(sT0)}, {S(sT0)}, {S(sT1)}
    s_add_u32 {S(sT0)}, {S(sT0)}, {WS_VT + 18*16}
    v_mov_b32 v32, 0x3f803f80
    v_mov_b32 v33, 0x3f803f80
    v_mov_b32 v34, 0x3f803f80
    v_mov_b32 v35, 0x3f803f80
    """)
    p(f"buffer_store_dwordx4 v[32:35], v26, {S(sWS,4)}, {S(sT0)} offen {cfg['sc']}", tag="qkvst")
    p(f"""
    s_lshl_b32 {S(sT1)}, {S(sS)}, 10
    s_add_u32 {S(sPB)}, {S(sPB)}, {S(sT1)}
    s_add_u32 {S(sPB)}, {S(sPB)}, {WS_P}
    s_mov_b32 {S(sC0)}, {f32bits(-2*math.sqrt(2/math.pi)*math.log2(math.e))}
    s_mov_b32 {S(sC1)}, {f32bits(-2*math.sqrt(2/math.pi)*0.044715*math.log2(math.e))}
    s_mov_b32 {S(sONE)}, 0x3f803f80
    s_mov_b32 {S(sLO)}, 0x00003f80
    s_mov_b32 {S(sHI)}, 0x3f800000
    """)

def red8(p, r):
    p(f"""
    v_add_f32_dpp {V(r)}, {V(r)}, {V(r)} quad_perm:[1,0,3,2] row_mask:0xf bank_mask:0xf
    v_add_f32_dpp {V(r)}, {V(r)}, {V(r)} quad_perm:[2,3,0,1] row_mask:0xf bank_mask:0xf
    v_add_f32_dpp {V(r)}, {V(r)}, {V(r)} row_half_mirror row_mask:0xf bank_mask:0xf
    """)
def rbf(p, dst, src):
    p(f"v_cvt_pk_bf16_f32 {V(dst)}, {V(src)}, {V(src)}\nv_lshlrev_b32 {V(dst)}, 16, {V(dst)}")

def ln_rg(p, rg, pre_write=None):
    raw = 40 + 36 * rg; T = 184
    for i in range(36):
        c = "0" if i < 2 else V(30 + (i & 1))
        p(f"v_dot2_f32_bf16 {V(30+(i&1))}, {V(raw+i)}, {S(sONE)}, {c}")
    p("v_add_f32 v30, v30, v31"); red8(p, 30)
    p(f"v_mul_f32 v30, {f32bits(1/576)}, v30")
    rbf(p, 31, 30)
    p("v_sub_f32 v30, v30, v31\nv_sub_f32 v31, 0, v31")
    for i in range(36):
        p(f"v_dot2_f32_bf16 {V(T+2*i)}, {V(raw+i)}, {S(sLO)}, v31\nv_dot2_f32_bf16 {V(T+2*i+1)}, {V(raw+i)}, {S(sHI)}, v31")
    for i in range(36):
        d = 32 + 2 * (i & 1)
        if i < 2: p(f"v_pk_mul_f32 {V(d,2)}, {V(T+2*i,2)}, {V(T+2*i,2)}")
        else: p(f"v_pk_fma_f32 {V(d,2)}, {V(T+2*i,2)}, {V(T+2*i,2)}, {V(d,2)}")
    p("v_pk_add_f32 v[32:33], v[32:33], v[34:35]\nv_add_f32 v32, v32, v33"); red8(p, 32)
    p(f"v_mul_f32 v32, {f32bits(1/576)}, v32\nv_fma_f32 v32, -v30, v30, v32\nv_max_f32 v32, 0, v32")
    rbf(p, 32, 32)
    p(f"v_add_f32 v32, {f32bits(1e-5)}, v32")
    rbf(p, 32, 32)
    p("v_sqrt_f32 v32, v32")
    rbf(p, 32, 32)
    p("v_rcp_f32 v32, v32\ns_nop 0\nv_mov_b32 v33, v32")
    for i in range(36): p(f"v_pk_mul_f32 {V(T+2*i,2)}, {V(T+2*i,2)}, v[32:33]")
    for i in range(36): p(f"v_cvt_pk_bf16_f32 {V(raw+i)}, {V(T+2*i)}, {V(T+2*i+1)}")
    if pre_write: p(pre_write)
    for j in range(9):
        p(f"ds_write_b128 v29, {V(raw+4*j,4)} offset:{2048*j + 128*(rg&1)}", tag="ew")

def eread(ks, fh2, rho):
    return f"ds_read_b128 {xfrag(ks, 2*fh2+rho)}, {V(vER0 + (ks&1))} offset:{18432*fh2 + 1024*ks}"

def layernorm(p, cfg):
    ln_rg(p, 0); ln_rg(p, 1)
    p("s_waitcnt lgkmcnt(0)\ns_barrier")
    for ks in range(18):
        for fh2 in (0, 1): p(eread(ks, fh2, 0), tag="er0")
    ln_rg(p, 2, pre_write="s_waitcnt lgkmcnt(0)\ns_barrier")
    ln_rg(p, 3)
    p("WAIT vm:st0, lg:*\ns_barrier")

def trread(si, a, ks, t, dst):
    kind, b, kh = STAGES[si]
    k = ks - 9 * kh
    if kind == "H": return f"ds_read_b64_tr_b16 {dst}, {V(vTRH)} offset:{18432*a + 2048*k + 256*t}"
    if kind == "D": return f"ds_read_b64_tr_b16 {dst}, {V(vTD+a)} offset:{4096*k + 2048*t}"
    return f"ds_read_b64_tr_b16 {dst}, {V(vTR0+a)} offset:{4096*k + 512*t}"

def mainpart(cfg):
    sc = Sched(); pre = Prog()
    MF = "v_mfma_f32_16x16x32_bf16"
    setof = {}; nset = 0
    groups = []
    for si, (kind, b, kh) in enumerate(STAGES):
        if kind != "D":
            if kh == 0: setof[(kind, b)] = nset % 3; nset += 1
            st = setof[(kind, b)]
            for a in (0, 1):
                for tri in range(3):
                    kss = [9 * kh + 3 * tri + k for k in range(3)]
                    groups.append(dict(si=si, frags=[(a, ks) for ks in kss],
                                       mf=[(k, xfrag(kss[k], tt), acc(st, a, tt), kss[k] == 0, (kind, b, a, tt)) for tt in range(4) for k in range(3)]))
        else:
            base = (vACC + 64) if b % 2 == 0 else vXV
            plan = [(nt, list(range(9))) for nt in range(4)]
            if b == 0: plan = [(nt, [0, 1, 2, 3, 4, 5, 8]) for nt in range(4)] + [((0, 1, 2, 3), [6, 7])]
            for nts, kss in plan:
                if not isinstance(nts, tuple): nts = (nts,)
                fr = [(nt, ks) for nt in nts for ks in kss]
                groups.append(dict(si=si, frags=fr,
                                   mf=[(fr.index((nt, ks)), V(vH + 4 * (2 * ks + e), 4), base + 8 * nt + 4 * e, ks == 0, ("D", b, nt, e)) for nt in nts for e in range(2) for ks in kss]))
    firstw = {}; lastw = {}; stage_start = {}; nD = 0; nT = 0
    for G in groups:
        isD = STAGES[G["si"]][0] == "D"
        if isD: G["buf"] = [("a", 36 * (nD % 2) + 4 * i) for i in range(9)]; nD += 1
        else: G["buf"] = [("v", vAF + 12 * (nT % 2) + 4 * i) for i in range(3)]; nT += 1
        G["start"] = len(sc.mf); stage_start.setdefault(G["si"], G["start"]); G["fuse"] = {}
        for (fi, Bop, ac, first, key) in G["mf"]:
            t, r = G["buf"][fi]
            g = sc.mfma(f"{MF} {V(ac,4)}, {t}[{r}:{r+3}], {Bop}, {'0' if first else V(ac,4)}")
            G["fuse"].setdefault(fi, g); firstw.setdefault(key, g); lastw[key] = g
        G["end"] = len(sc.mf)
    NG = len(sc.mf); nst = len(STAGES)
    bar = {}
    for si in range(nst - 1):
        G = [x for x in groups if x["si"] == si][-1]
        g = G["start"] + (0 if STAGES[si][0] == "D" else 1)
        w = sc.task(f"WAIT vm:st{si+1}, lg:*", "s", earliest=g, deadline=g, prio=0)
        bar[si] = sc.task("s_barrier", "s", deps=[w], earliest=g, deadline=g, prio=0)
    if cfg.get("stamps"):
        for si in range(nst - 1):
            g = bar[si].earliest
            if si: sc.task(f"v_writelane_b32 v255, s96, {16+si-1}", "v", deps=[bar[si]], earliest=g + 1, deadline=g + 1, prio=0)
            sc.task("s_memtime s[96:97]", "s", deps=[bar[si]], earliest=g + 2, deadline=g + 2, prio=0)
    upd = {}; lastread = {}
    for gi, G in enumerate(groups):
        si = G["si"]; kind = STAGES[si][0]; reads = []
        firstgrp = gi == 0 or groups[gi - 1]["si"] != si
        lastgrp = gi + 1 == len(groups) or groups[gi + 1]["si"] != si
        if firstgrp and si > 0:
            e = groups[gi - 2]["start"] + 2; dl = groups[gi - 1]["start"]
            U = []
            deps = lastread.get(si - 1, [])
            if kind == "H":
                if STAGES[si][2] == 1: U.append(sc.task(f"v_add_u32 {V(vTRH)}, {SLOT}, {V(vTRH)}", "v", deps=deps, earliest=e, deadline=dl, prio=1))
            elif kind == "D":
                if STAGES[si][1] == 0:
                    t0 = None
                    for txt in (f"v_lshrrev_b32 {V(vTD)}, 2, v0", f"v_bfe_u32 {V(vTD+1)}, v0, 3, 2", f"v_and_b32 {V(vTD+2)}, 3, v0",
                                f"v_lshlrev_b32 {V(vTD)}, 7, {V(vTD)}", f"v_lshl_add_u32 {V(vTD)}, {V(vTD+1)}, 5, {V(vTD)}",
                                f"v_lshl_add_u32 {V(vTD)}, {V(vTD+2)}, 3, {V(vTD)}", f"v_add_u32 {V(vTD)}, {(si%4)*SLOT}, {V(vTD)}",
                                f"v_xor_b32 {V(vTD+1)}, 32, {V(vTD)}", f"v_xor_b32 {V(vTD+2)}, 64, {V(vTD)}", f"v_xor_b32 {V(vTD+3)}, 0x60, {V(vTD)}",
                                f"v_lshlrev_b32 {V(vPS)}, 4, v0"):
                        t0 = sc.task(txt, "v", deps=[t0], earliest=stage_start[2], deadline=dl, prio=8); U.append(t0)
                else:
                    d = (si % 4 - (si - 1) % 4) * SLOT
                    for a in range(4):
                        U.append(sc.task(f"v_add_u32 {V(vTD+a)}, {d & 0xffffffff}, {V(vTD+a)}", "v", deps=lastread[(si - 1, a)], earliest=0, deadline=dl if a == 0 else G["start"] + 18 * (a - 1) - 1, prio=1))
            else:
                prev = si - 1 if STAGES[si - 1][0] != "H" else 3
                d = (si % 4 - prev % 4) * SLOT
                for a in (0, 1):
                    U.append(sc.task(f"v_add_u32 {V(vTR0+a)}, {d & 0xffffffff}, {V(vTR0+a)}", "v", deps=lastread.get(prev, []), earliest=e, deadline=dl, prio=1))
            upd[si] = U
        nfr = len(G["frags"])
        if gi == 0:
            for fi, (a, ks) in enumerate(G["frags"]):
                t_, r = G["buf"][fi]
                for fh2 in (0, 1): pre(eread(ks, fh2, 1), tag=f"e1_{ks}")
                for t in (0, 1): pre(trread(si, a, ks, t, f"{t_}[{r+2*t}:{r+2*t+1}]"), tag=f"f{gi}_{fi}")
            pre("WAIT lg:*")
            continue
        P = groups[gi - 1]; e0 = P["start"]; span = P["end"] - P["start"]
        if firstgrp: e0 = bar[si - 1].earliest + 1
        if kind == "D":
            lim = P["end"] - (6 if lastgrp and si < nst - 1 else 0)
        else: lim = e0 + 7
        prevt = None
        for fi, (a, ks) in enumerate(G["frags"]):
            t_, r = G["buf"][fi]
            for t in (0, 1):
                j = 2 * fi + t
                dl = e0 + (j * (lim - e0)) // (2 * nfr) if kind == "D" else min(e0 + j + 2, G["fuse"][fi] - 5)
                if kind == "D" and not (lastgrp and si < nst - 1): dl = min(max(dl, e0 + j), G["fuse"][fi] - 6)
                deps = [(prevt, 0)] if prevt else []
                if kind == "D" and STAGES[si][1] > 0: deps.append(upd[si][a])
                else: deps += upd.get(si, [])
                if firstgrp: deps.append(bar[si - 1])
                prevt = sc.task(trread(si, a, ks, t, f"{t_}[{r+2*t}:{r+2*t+1}]"), "m", deps=deps, earliest=e0, deadline=max(dl, e0), prio=1, tag=f"f{gi}_{fi}")
                lastread[si] = [prevt]; lastread[(si, a)] = [prevt]
        if kind == "D":
            wl = [(0, 2), (3, 5), (6, nfr - 1)] if nfr > 6 else [(0, nfr - 1)]
            if nfr == 8: wl = [(0, 1), (2, 3), (4, 5), (6, 7)]
        else: wl = [(0, 0), (1, 1), (2, 2)]
        for f0, f1 in wl:
            g = G["fuse"][f0] - 1
            sc.task(f"WAIT lg:f{gi}_{f1}", "s", earliest=g, deadline=g, prio=0)
    prevt = None; g0 = 0
    for ks in range(3, 18):
        use = groups[ks // 3]["start"] + 3 + ks % 3 if ks < 9 else bar[0].earliest
        for fh2 in (0, 1):
            prevt = sc.task(eread(ks, fh2, 1), "m", deps=[(prevt, 0)] if prevt else [], earliest=0, deadline=min(use - 8, 2 + (2 * (ks - 3) + fh2) * 52 // 30), prio=2, tag=f"e1_{ks}")
        if ks < 9: sc.task(f"WAIT lg:e1_{ks}", "s", earliest=use - 1, deadline=use - 1, prio=0)
    plan = {1: [2, 3], 2: [4, 5]}
    for j in range(3, nst - 3): plan[j] = [j + 3]
    prevd = None
    for j, tg in plan.items():
        L = [(si, x) for si in tg for x in dma_list(si)]
        e0 = bar[j - 1].earliest + 1; span = 66
        for i, (si, (sb, c, m0c, vo, sr, isH)) in enumerate(L):
            e = e0 + i * span // len(L)
            t1 = sc.task(f"s_add_u32 {S(sSO)}, {S(sb)}, {c}", "s", deps=[prevd], earliest=e - 3, prio=3)
            t2 = sc.task(f"s_add_u32 m0, {S(sT3 if isH else sLW)}, {m0c}", "s", deps=[prevd], earliest=e - 3, prio=3)
            prevd = sc.task(f"buffer_load_dwordx4 {V(vo)}, {S(sr,4)}, {S(sSO)} offen lds", "m", deps=[t1, t2, bar[j - 1]], earliest=e, deadline=e + 6, prio=2, tag=f"st{si}")
    pre(f"s_lshr_b32 {S(sT0)}, {S(sWV)}, 1\ns_mul_i32 {S(sT0)}, {S(sT0)}, 18432\ns_and_b32 {S(sT3)}, {S(sWV)}, 1\ns_lshl_b32 {S(sT3)}, {S(sT3)}, 10\ns_add_u32 {S(sT3)}, {S(sT3)}, {S(sT0)}")
    order = [k for k in setof]
    def next_write(kind, b, a, tt):
        i = order.index((kind, b))
        if i + 3 < len(order): return firstw[order[i + 3] + (a, tt)]
        if setof[(kind, b)] == 2: return firstw[("D", 0, 2 * a + (tt >> 1), tt & 1)]
        return NG
    LAT = 4
    for bi, kind in enumerate("AB"):
        st = setof[(kind, 0)]
        for a in (0, 1):
            for tt in range(4):
                r = acc(st, a, tt); e = lastw[(kind, 0, a, tt)] + LAT + 4; dl = next_write(kind, 0, a, tt) - 3
                mu = [sc.task(f"v_mul_f32 {V(r+i)}, {S(sSCA+bi)}, {V(r+i)}", "v", earliest=e, prio=6) for i in range(4)] if kind == "A" else []
                c0 = sc.task(f"v_cvt_pk_bf16_f32 {V(r)}, {V(r)}, {V(r+1)}", "v", deps=mu, earliest=e, prio=6)
                c1 = sc.task(f"v_cvt_pk_bf16_f32 {V(r+1)}, {V(r+2)}, {V(r+3)}", "v", deps=mu + [c0], earliest=e, prio=6)
                sc.task(f"buffer_store_dwordx2 {V(r,2)}, {V(vST+2*bi+a)}, {S(sWS if bi == 0 else sWSB,4)}, {S((sSTA, sSTB)[bi]+tt)} offen {cfg['sc']}", "m", deps=[c0, c1], deadline=dl, prio=6, tag="qkvst")
    tlast = [None] * NGT; ne = [0]
    def gelu(g, e):
        k = ne[0] % NGT; T = vGT + k; ne[0] += 1
        t = sc.task(f"v_mul_f32 {V(T)}, {V(g)}, {V(g)}", "v", deps=[tlast[k]], earliest=e, prio=5)
        t = sc.task(f"v_fma_f32 {V(T)}, {V(T)}, {S(sC1)}, {V(vGT+11)}", "v", deps=[t], prio=5)
        t = sc.task(f"v_mul_f32 {V(T)}, {V(T)}, {V(g)}", "v", deps=[t], prio=5)
        t = sc.task(f"v_exp_f32 {V(T)}, {V(T)}", "t", deps=[t], prio=4)
        t = sc.task(f"v_add_f32 {V(T)}, 1.0, {V(T)}", "v", deps=[t], prio=5)
        t = sc.task(f"v_rcp_f32 {V(T)}, {V(T)}", "t", deps=[t], prio=4)
        t = sc.task(f"v_mul_f32 {V(g)}, {V(g)}, {V(T)}", "v", deps=[t], prio=5)
        tlast[k] = t; return t
    pre(f"v_mov_b32 {V(vGT+11)}, {S(sC0)}")
    sidx = {x: i for i, x in enumerate(STAGES)}
    prev_reads_bar = None
    D0 = [G for G in groups if G["si"] == sidx[("D", 0, 0)]]
    gx = D0[-1]["start"] - cfg.get("xlead", 9)
    wx = sc.task("WAIT lg:xw3", "s", earliest=gx, deadline=gx, prio=0)
    barx = sc.task("s_barrier", "s", deps=[wx], earliest=gx, deadline=gx, prio=0)
    fix = None
    for b in (-1, 0, 1, 2, 3):
        wbar = bar[sidx[("G", b + 1, 1)]] if b < 3 else barx
        if b < 0:
            st = setof[("H", 0)]; W = []
            for tt in range(4):
                g = acc(st, 0, tt); u = acc(st, 1, tt)
                ge = [gelu(g + i, lastw[("H", 0, 0, tt)] + LAT) for i in range(4)]
                mu = [sc.task(f"v_mul_f32 {V(u+i)}, {V(u+i)}, {V(g+i)}", "v", deps=[ge[i]], earliest=lastw[("H", 0, 1, tt)] + LAT, prio=5) for i in range(4)]
                c = [sc.task(f"v_cvt_pk_bf16_f32 {V(g+i)}, {V(u+2*i)}, {V(u+2*i+1)}", "v", deps=mu, prio=5) for i in range(2)]
                W.append(sc.task(f"ds_write_b64 {V(vXW)}, {V(g,2)} offset:{2048*tt}", "m", deps=c, deadline=wbar.earliest - 4, prio=3, tag="xwH", cost=8))
            fix = sc.task(f"v_add_u32 {V(vXW)}, {S(sXFIX)}, {V(vXW)}", "v", deps=W, prio=5)
            rd = [(8, e, 2048 * e) for e in range(2)]
        else:
            sg, su = setof[("G", b)], setof[("U", b)]
            ge = {}
            for a in (0, 1):
                for tt in range(4):
                    for i in range(4): ge[(a, tt, i)] = gelu(acc(sg, a, tt) + i, lastw[("G", b, a, tt)] + LAT)
            cv = {}
            for a in (0, 1):
                for tt in range(4):
                    g = acc(sg, a, tt); u = acc(su, a, tt); g0_ = acc(sg, 0, tt)
                    mu = [sc.task(f"v_mul_f32 {V(u+i)}, {V(u+i)}, {V(g+i)}", "v", deps=[ge[(a, tt, i)]], earliest=lastw[("U", b, a, tt)] + LAT, prio=5) for i in range(4)]
                    extra = cv.get((0, tt), [])
                    cv[(a, tt)] = [sc.task(f"v_cvt_pk_bf16_f32 {V(g0_+2*a+i)}, {V(u+2*i)}, {V(u+2*i+1)}", "v", deps=mu + extra, prio=5) for i in range(2)]
            for tt in range(4):
                dl = min(wbar.earliest - (4 if b < 3 else 2), next_write("G", b, 0, tt) - 3)
                sc.task(f"ds_write_b128 {V(vXW)}, {V(acc(sg,0,tt),4)} offset:{2048*tt}", "m", deps=cv[(0, tt)] + cv[(1, tt)] + [fix, prev_reads_bar], deadline=dl, prio=3, tag=f"xw{b}", cost=8)
            rd = [(2 * b + f2, e, 2048 * e + 1024 * f2) for e in range(2) for f2 in range(2)]
        for (ks, e, off) in rd:
            dl = wbar.earliest + (40 if b < 3 else 2)
            sc.task(f"ds_read_b128 {V(vH+4*(2*ks+e),4)}, {V(vXR)} offset:{off}", "m", deps=[wbar], earliest=wbar.earliest + (9 if b < 3 else 1), deadline=dl, prio=3, tag=f"xr{b}")
        if b < 3: prev_reads_bar = bar[sidx[("U", b + 1, 0)]]
    g = D0[-1]["start"] - 1
    sc.task("WAIT lg:xr3", "s", earliest=g, deadline=g, prio=0)
    npk = 0; lastst = {}
    for j in range(9):
        base = (vACC + 64) if j % 2 == 0 else vXV
        for nt in range(4):
            pk = vAF + 4 * (npk % 6); dep = lastst.get(npk % 6); cs = []
            for e in range(2):
                r = base + 8 * nt + 4 * e
                for i in range(2):
                    cs.append(sc.task(f"v_cvt_pk_bf16_f32 {V(pk+2*e+i)}, {V(r+2*i)}, {V(r+2*i+1)}", "v", deps=[(dep, 2)] if dep else [], earliest=lastw[("D", j, nt, e)] + LAT,
                                      deadline=(firstw[("D", j + 2, nt, e)] - 2) if j < 7 else None, prio=6))
            t1 = sc.task(f"s_add_u32 {S(sT0)}, {S(sPB)}, {(4*j+nt)*16384}", "s", deps=[lastst.get((npk - 1) % 6)], earliest=lastw[("D", j, nt, 0)], prio=6)
            lastst[npk % 6] = sc.task(f"buffer_store_dwordx4 {V(pk,4)}, {V(vPS)}, {S(sWS,4)}, {S(sT0)} offen {cfg.get('psc', cfg['sc'])}", "m", deps=cs + [t1], prio=6, tag="pst")
            npk += 1
    out, left = sc.run(verbose=cfg.get("verbose"))
    print(f"k1: {NG} mfma, over budget {sc.over} cycles, leftover {len(left)}")
    res = []; mi = -1
    for ins in out:
        if ins.kind == "mfma":
            mi += 1
            if mi == stage_start[2]: res.append(Ins("MARK_B0:"))
            if mi == stage_start[4]: res.append(Ins("MARK_B1:"))
            if cfg.get("stamps"):
                for k, si in enumerate((4, 6, 22)):
                    if mi == stage_start[si]: res.append(Ins(f"s_memtime s[{84+2*(3+k)}:{85+2*(3+k)}]"))
        res.append(ins)
    return pre.items + res + [Ins(t.text, t.tag) for t in left]

def expand_B(out):
    i0 = next(i for i, x in enumerate(out) if x.text == "MARK_B0:"); i1 = next(i for i, x in enumerate(out) if x.text == "MARK_B1:")
    seg = out[i0 + 1:i1]; sw = []
    for x in seg:
        if x.kind == "mfma": sw.append(Ins(f"{x.op} {x.ops[0]}, {x.ops[2]}, {x.ops[1]}, {x.ops[3]}"))
        else: sw.append(x)
    return (out[:i0] + [Ins(f"s_cmp_eq_u32 {S(sISV)}, 0"), Ins("s_cbranch_scc1 L_Bqk")] + sw + [Ins("L_Bdone:")] + out[i1 + 1:],
            [Ins("L_Bqk:")] + seg + [Ins("s_branch L_Bdone")])

def build(cfg):
    p = Prog()
    stamp(p, 0, cfg)
    setup(p, cfg); setup2(p, cfg)
    stamp(p, 1, cfg)
    layernorm(p, cfg)
    stamp(p, 2, cfg)
    p.extend(mainpart(cfg))
    return p
```

```python
from common import *

vKM, vKT, vVA, vIDX = 1, 2, 3, 4
vQM, vQT = 8, 24
vK, vV, vT = 28, 44, 76
vS = 80
vO = 144
vOMA, vOTA, vCW, vCR = 208, 209, 210, 211
vTMP = 212
sKO, sVO, sCNT, sKO0, sVO0, sSLOW, sOMO, sOTO = 61, 62, 63, 64, 65, 66, 67, 68
LDS_C = 129024
LDS_F = LDS_C + 24576

def kload(p, slot, so, cfg):
    p(f"buffer_load_dwordx2 {V(vK+4*slot,2)}, {V(vKM)}, {S(sWS,4)}, {S(so)} offen {cfg['sc']}", tag=f"k{slot}")
    p(f"buffer_load_dwordx2 {V(vK+4*slot+2,2)}, {V(vKM)}, {S(sWS,4)}, {S(so)} offen offset:256 {cfg['sc']}", tag=f"k{slot}")

def setup(p, cfg):
    sc = cfg["sc"]
    p(f"""
    s_lshr_b32 {S(sT0)}, {S(sWV)}, 1
    s_and_b32 {S(sT1)}, {S(sWV)}, 1
    v_and_b32 v5, 31, v0
    v_lshrrev_b32 v6, 5, v0
    s_mul_i32 {S(sT2)}, {S(sT0)}, {5*256}
    v_lshlrev_b32 v7, 9, v6
    v_add_u32 v7, {S(sT2)}, v7
    v_lshl_add_u32 {V(vTMP)}, v5, 3, v7
    s_lshl_b32 {S(sT2)}, {S(sT0)}, 2
    s_add_u32 {S(sT2)}, {S(sT2)}, 1024
    v_mul_u32_u24 {V(vTMP+1)}, {QK_T}, v6
    v_add_u32 {V(vTMP+1)}, {S(sT2)}, {V(vTMP+1)}
    v_lshl_add_u32 {V(vTMP+2)}, v5, 3, {V(vTMP+1)}
    v_bfe_u32 {V(vTMP+3)}, v5, 2, 1
    v_lshlrev_b32 {V(vTMP+3)}, 4, {V(vTMP+3)}
    v_lshrrev_b32 {V(vTMP+4)}, 3, v5
    v_lshl_add_u32 {V(vTMP+3)}, {V(vTMP+4)}, 2, {V(vTMP+3)}
    v_and_or_b32 {V(vTMP+3)}, v5, 3, {V(vTMP+3)}
    v_lshl_add_u32 {V(vKM)}, {V(vTMP+3)}, 3, v7
    v_lshl_add_u32 {V(vKT)}, {V(vTMP+3)}, 3, {V(vTMP+1)}
    ; V address
    v_mul_u32_u24 {V(vTMP+4)}, {VT_G}, v6
    v_cmp_eq_u32 vcc, 22, v5
    v_cndmask_b32 {V(vTMP+5)}, v5, 18, vcc
    v_lshl_add_u32 {V(vVA)}, {V(vTMP+5)}, 4, {V(vTMP+4)}
    v_cmp_lt_u32 vcc, 18, {V(vTMP+5)}
    v_mov_b32 {V(vTMP+4)}, 0x7fff0000
    v_cndmask_b32 {V(vVA)}, {V(vVA)}, {V(vTMP+4)}, vcc
    s_mul_i32 {S(sT2)}, {S(sS)}, {QK_PAIR}
    s_mul_i32 {S(sT3)}, {S(sT1)}, {32*QK_T}
    s_add_u32 {S(sKO0)}, {S(sT2)}, {S(sT3)}
    s_add_u32 {S(sKO0)}, {S(sKO0)}, {WS_QK+QK_SEC}
    s_lshl_b32 {S(sT3)}, {S(sS)}, 1
    s_add_u32 {S(sT3)}, {S(sT3)}, {S(sT0)}
    s_mul_i32 {S(sVO0)}, {S(sT3)}, {VT_HEAD}
    s_mul_i32 {S(sT3)}, {S(sT1)}, {32*VT_T}
    s_add_u32 {S(sVO0)}, {S(sVO0)}, {S(sT3)}
    s_add_u32 {S(sVO0)}, {S(sVO0)}, {WS_VT}
    v_bfe_u32 {V(vTMP+4)}, v0, 4, 1
    v_lshlrev_b32 {V(vTMP+4)}, 14, {V(vTMP+4)}
    v_lshl_add_u32 {V(vTMP+4)}, v6, 8, {V(vTMP+4)}
    v_and_b32 {V(vTMP+5)}, 15, v0
    v_lshl_add_u32 {V(vOMA)}, {V(vTMP+5)}, 4, {V(vTMP+4)}
    s_lshl_b32 {S(sOMO)}, {S(sM)}, 1
    s_add_u32 {S(sOMO)}, {S(sOMO)}, {S(sT1)}
    s_lshl_b32 {S(sOMO)}, {S(sOMO)}, 6
    s_add_u32 {S(sOMO)}, {S(sOMO)}, {S(sS)}
    s_lshl_b32 {S(sOMO)}, {S(sOMO)}, 1
    s_add_u32 {S(sOMO)}, {S(sOMO)}, {S(sT0)}
    s_lshl_b32 {S(sOMO)}, {S(sOMO)}, 9
    s_add_u32 {S(sOMO)}, {S(sOMO)}, {WS_OM}
    v_lshlrev_b32 {V(vOTA)}, 2, v5
    v_cmp_lt_u32 vcc, 31, v0
    v_mov_b32 {V(vTMP+4)}, 0x7fff0000
    v_cndmask_b32 {V(vOTA)}, {V(vOTA)}, {V(vTMP+4)}, vcc
    s_lshl_b32 {S(sOTO)}, {S(sM)}, 4
    s_add_u32 {S(sOTO)}, {S(sOTO)}, {S(sS)}
    s_lshl_b32 {S(sOTO)}, {S(sOTO)}, 2
    s_add_u32 {S(sOTO)}, {S(sOTO)}, {S(sWV)}
    s_lshl_b32 {S(sOTO)}, {S(sOTO)}, 8
    s_add_u32 {S(sOTO)}, {S(sOTO)}, {WS_OT}
    s_mul_i32 {S(sT3)}, {S(sWV)}, 6144
    s_add_u32 {S(sT3)}, {S(sT3)}, {LDS_C}
    v_lshl_add_u32 {V(vCW)}, v0, 4, {S(sT3)}
    s_xor_b32 {S(sT3)}, {S(sWV)}, 1
    s_mul_i32 {S(sT3)}, {S(sT3)}, 6144
    s_add_u32 {S(sT3)}, {S(sT3)}, {LDS_C}
    v_lshl_add_u32 {V(vCR)}, v0, 4, {S(sT3)}
    """)

def first_loads(p, cfg):
    sc = cfg["sc"]
    p(f"s_mul_i32 {S(sT2)}, {S(sS)}, {QK_PAIR}\ns_and_b32 {S(sT1)}, {S(sWV)}, 1")
    p(f"s_mov_b32 {S(sKO)}, {S(sKO0)}\ns_mov_b32 {S(sVO)}, {S(sVO0)}")
    for pp in (0, 1):
        p(f"""
        s_xor_b32 {S(sT3)}, {S(sT1)}, {pp}
        s_lshl_b32 {S(sT0)}, {S(sM)}, 1
        s_add_u32 {S(sT3)}, {S(sT3)}, {S(sT0)}
        s_mul_i32 {S(sT3)}, {S(sT3)}, {2*QK_T}
        s_add_u32 {S(sT3)}, {S(sT3)}, {S(sT2)}
        """)
        if WS_QK: p(f"s_add_u32 {S(sT3)}, {S(sT3)}, {WS_QK}")
        p(f"buffer_load_dword {V(vQT+2*pp)}, {V(vTMP+2)}, {S(sWS,4)}, {S(sT3)} offen {sc}")
        for j in (0, 1):
            for u in (0, 1):
                p(f"buffer_load_dwordx2 {V(vQM+8*pp+4*j+2*u,2)}, {V(vTMP)}, {S(sWS,4)}, {S(sT3)} offen offset:{QK_T*j+256*u} {sc}")
    p(f"buffer_load_dword {V(vT)}, {V(vKT)}, {S(sWS,4)}, {S(sKO)} offen {sc}", tag="k0")
    for t in range(4):
        kload(p, t, sKO, cfg)
        if t == 3:
            p(f"s_sub_u32 {S(sT0)}, {S(sKO)}, {QK_T}")
            p(f"buffer_load_dword {V(vT+2)}, {V(vKT)}, {S(sWS,4)}, {S(sT0)} offen {sc}", tag="k2")
        p(f"s_add_u32 {S(sKO)}, {S(sKO)}, {QK_T}")
        if t < 3:
            for i in (0, 1): p(f"buffer_load_dwordx4 {V(vV+8*t+4*i,4)}, {V(vVA)}, {S(sWS,4)}, {S(sVO)} offen offset:{640*i} {sc}", tag=f"v{t}")
            p(f"s_add_u32 {S(sVO)}, {S(sVO)}, {VT_T}")

def init_regs(p):
    p(f"v_mov_b32 {V(vIDX)}, 0xdddddddd")
    for r in (vT + 1, vT + 3): p(f"v_mov_b32 {V(r)}, 0x3f803f80")
    for r in (vQT + 1, vQT + 3): p(f"v_mov_b32 {V(r)}, 0")
    for r in list(range(vO, vO + 64)) + list(range(vV + 28, vV + 32)) + list(range(vS + 56, vS + 64)): p(f"v_mov_b32 {V(r)}, 0")

def Tm(Y, kt, qp): return f"v_mfma_f32_32x32x4_2b_bf16 {V(Y,32)}, {V(vT+2*((kt>>1)&1),2)}, {V(vQT+2*qp,2)}, 0 cbsz:1 abid:{kt&1}"
def Mm(Y, kt, qp, j): return f"v_mfma_f32_32x32x16_bf16 {V(Y+16*j,16)}, {V(vK+4*kt,4)}, {V(vQM+8*qp+4*j,4)}, {V(Y+16*j,16)}"
def PV(X, kt, qp, j, i): return f"v_smfmac_f32_32x32x32_bf16 {V(vO+32*qp+16*j,16)}, {V(vV+8*kt+4*i,4)}, {V(X+16*j+8*i,8)}, {V(vIDX)}"

def mainloop(p, cfg, extra=None):
    sc = cfg["sc"]
    p("WAIT vm:k0")
    p(Tm(vS, 0, 0)); p(Mm(vS, 0, 0, 0)); p(Mm(vS, 0, 0, 1))
    p(f"s_mov_b32 {S(sCNT)}, 8\ns_nop 11")
    b = Prog(); b("L_att:")
    for ps in range(8):
        X = vS + 32 * (ps & 1); Y = vS + 32 * ((ps + 1) & 1)
        kt, qp = ps >> 1, ps & 1; nk, nq = ((ps + 1) >> 1) & 3, (ps + 1) & 1; pk, pq = ((ps - 1) >> 1) & 3, (ps - 1) & 1
        ld = lambda w, d, a, so, off: f"buffer_load_dword{w} {d}, {V(a)}, {S(sWS,4)}, {S(so)} offen offset:{off} {sc}"
        after = {k: [] for k in range(7)}
        if qp == 0:
            after[0].append((ld("x4", V(vV + 8 * pk, 4), vVA, sVO, 0), f"v{pk}"))
            after[2].append((ld("x4", V(vV + 8 * pk + 4, 4), vVA, sVO, 640), f"v{pk}"))
            after[3].append((f"s_add_u32 {S(sVO)}, {S(sVO)}, {VT_T}", None))
            after[1].append((f"WAIT vm:v{kt}", None))
            after[6].append((f"WAIT vm:k{(kt+1)&3}", None))
        else:
            after[0].append((ld("x2", V(vK + 4 * kt, 2), vKM, sKO, 0), f"k{kt}"))
            after[2].append((ld("x2", V(vK + 4 * kt + 2, 2), vKM, sKO, 256), f"k{kt}"))
            if kt & 1:
                after[3].append((f"s_sub_u32 {S(sT0)}, {S(sKO)}, {QK_T}", None))
                after[4].append((ld("", V(vT + 2 * (kt >> 1)), vKT, sT0, 0), f"k{kt-1}"))
            after[5].append((f"s_add_u32 {S(sKO)}, {S(sKO)}, {QK_T}", None))
        if ps == 7:
            after[6].append((f"s_sub_u32 {S(sCNT)}, {S(sCNT)}, 1", None))
        if extra: extra(ps, after)
        mf = {2: PV(Y, pk, pq, 1, 1), 5: Tm(Y, nk, nq), 13: PV(X, kt, qp, 0, 0), 19: PV(X, kt, qp, 0, 1), 22: Mm(Y, nk, nq, 0), 25: Mm(Y, nk, nq, 1), 28: PV(X, kt, qp, 1, 0)}
        k = 0
        for e in range(32):
            if e in mf:
                b(mf[e])
                for t, tag in after[k]: b(t, tag)
                k += 1
            b(f"v_exp_f32 {V(X+e)}, {V(X+e)}")
    b(f"s_cmp_lg_u32 {S(sCNT)}, 0\ns_cbranch_scc1 L_att")
    p.add(Loop(b))
    p(PV(vS + 32, 3, 1, 1, 1))

def finish(p, cfg):
    sc = cfg["sc"]
    p("L_chk:")
    T = vTMP
    p(f"v_mov_b32 {V(T)}, 0\nv_mov_b32 {V(T+1)}, 0\nv_mov_b32 {V(T+2)}, 0\nv_mov_b32 {V(T+3)}, 0")
    for j in (2, 3):
        for i in range(3): p(f"ds_write_b128 {V(vCW)}, {V(vO+16*j+4*i,4)} offset:{1024*(3*(j-2)+i)}")
    for j in range(4):
        for i in range(5): p(f"v_pk_fma_f32 {V(T,2)}, {V(vO+16*j+2*i,2)}, {V(T+2,2)}, {V(T,2)}")
    p(f"""
    v_add_f32 {V(T)}, {V(T)}, {V(T+1)}
    v_min3_f32 {V(T+1)}, {V(vO+10)}, {V(vO+26)}, {V(vO+42)}
    v_min_f32 {V(T+1)}, {V(T+1)}, {V(vO+58)}
    v_add_f32 {V(T+2)}, {V(vO+10)}, {V(vO+26)}
    v_add_f32 {V(T+3)}, {V(vO+42)}, {V(vO+58)}
    v_add_f32 {V(T+2)}, {V(T+2)}, {V(T+3)}
    v_add_f32 {V(T+2)}, {V(T+2)}, {V(T)}
    v_cmp_ngt_f32 vcc, 0x53800000, {V(T+2)}
    s_mov_b64 s[70:71], vcc
    v_cmp_nlt_f32 vcc, 0x2b800000, {V(T+1)}
    s_or_b64 vcc, vcc, s[70:71]
    s_cselect_b32 {S(sT0)}, 1, 0
    v_mov_b32 {V(T)}, {S(sT0)}
    s_lshl_b32 {S(sT1)}, {S(sWV)}, 2
    s_add_u32 {S(sT1)}, {S(sT1)}, {LDS_F}
    v_mov_b32 {V(T+1)}, {S(sT1)}
    ds_write_b32 {V(T+1)}, {V(T)}
    v_mov_b32 {V(T+1)}, {LDS_F}
    s_waitcnt lgkmcnt(0)
    s_barrier
    ds_read_b128 {V(T+4,4)}, {V(T+1)}
    """)
    for j in (0, 1):
        for i in range(3): p(f"ds_read_b128 {V(T+8+12*j+4*i,4)}, {V(vCR)} offset:{1024*(3*j+i)}")
    p(f"""
    v_or_b32 {V(T+4)}, {V(T+4)}, {V(T+5)}
    v_or3_b32 {V(T+4)}, {V(T+4)}, {V(T+6)}, {V(T+7)}
    v_readfirstlane_b32 {S(sT0)}, {V(T+4)}
    s_andn2_b32 {S(sT0)}, {S(sT0)}, {S(sSLOW)}
    s_cbranch_scc1 L_slow
    """)
    for j in (0, 1):
        o = vO + 16 * j; q = T + 8 + 12 * j
        p(f"v_add_f32 {V(o+10)}, {V(o+10)}, {V(q+10)}\nv_rcp_f32 {V(o+10)}, {V(o+10)}")
        for i in range(5): p(f"v_pk_add_f32 {V(o+2*i,2)}, {V(o+2*i,2)}, {V(q+2*i,2)}")
        p(f"v_mov_b32 {V(o+11)}, {V(o+10)}")
        for i in range(5): p(f"v_pk_mul_f32 {V(o+2*i,2)}, {V(o+2*i,2)}, {V(o+10,2)}")
        for i in range(5): p(f"v_cvt_pk_bf16_f32 {V(o+i)}, {V(o+2*i)}, {V(o+2*i+1)}")
        if j: p(f"s_add_u32 {S(sOMO)}, {S(sOMO)}, 32768")
        p(f"buffer_store_dwordx4 {V(o,4)}, {V(vOMA)}, {S(sWS,4)}, {S(sOMO)} offen {sc}", tag="ost")
        p(f"buffer_store_dword {V(o+4)}, {V(vOTA)}, {S(sWS,4)}, {S(sOTO)} offen offset:{128*j} {sc}", tag="ost")

def slowpath(cfg):
    sc = cfg["sc"]; p = Prog(); MX = vTMP + 36
    p(f"L_slow:\ns_waitcnt vmcnt(0) lgkmcnt(0)\ns_barrier\ns_mov_b32 {S(sSLOW)}, 1")
    for j in range(4): p(f"v_mov_b32 {V(MX+j)}, 0xff800000")
    for r in range(vO, vO + 64): p(f"v_mov_b32 {V(r)}, 0")
    for ps in (0, 1):
        p(f"s_mov_b32 {S(sKO)}, {S(sKO0)}\ns_mov_b32 {S(sVO)}, {S(sVO0)}\ns_mov_b32 {S(sCNT)}, 32")
        b = Prog(); b(f"L_slow{ps}:")
        b(f"buffer_load_dword {V(vT)}, {V(vKT)}, {S(sWS,4)}, {S(sKO)} offen {sc}"); kload(b, 0, sKO, cfg)
        if ps:
            for i in (0, 1): b(f"buffer_load_dwordx4 {V(vV+4*i,4)}, {V(vVA)}, {S(sWS,4)}, {S(sVO)} offen offset:{640*i} {sc}")
        for qp in (0, 1): b(Tm(vS + 32 * qp, 0, qp))
        for qp in (0, 1):
            for j in (0, 1): b(Mm(vS + 32 * qp, 0, qp, j))
        for t in range(4):
            x = vS + 16 * t
            if ps == 0:
                for i in range(8): b(f"v_max3_f32 {V(MX+t)}, {V(x+2*i)}, {V(x+2*i+1)}, {V(MX+t)}")
            else:
                for i in range(16): b(f"v_sub_f32 {V(x+i)}, {V(x+i)}, {V(MX+t)}")
                for i in range(16): b(f"v_exp_f32 {V(x+i)}, {V(x+i)}")
                for i in (0, 1): b(PV(vS + 32 * (t >> 1), 0, t >> 1, t & 1, i))
        b(f"s_add_u32 {S(sKO)}, {S(sKO)}, {QK_T}\ns_add_u32 {S(sVO)}, {S(sVO)}, {VT_T}\ns_sub_u32 {S(sCNT)}, {S(sCNT)}, 1\ns_cmp_lg_u32 {S(sCNT)}, 0\ns_cbranch_scc1 L_slow{ps}")
        p.add(Loop(b))
        if ps == 0:
            p(f"ds_write_b128 {V(vCW)}, {V(MX,4)}\nv_xor_b32 {V(vTMP)}, 512, {V(vCW)}\nv_xor_b32 {V(vTMP+1)}, 512, {V(vCR)}\ns_waitcnt lgkmcnt(0)\ns_barrier")
            p(f"ds_read_b128 {V(vTMP+4,4)}, {V(vTMP)}\nds_read_b128 {V(vTMP+8,4)}, {V(vCR)}\nds_read_b128 {V(vTMP+12,4)}, {V(vTMP+1)}")
            for j in range(4):
                p(f"v_max_f32 {V(MX+j)}, {V(MX+j)}, {V(vTMP+4+j)}\nv_max3_f32 {V(MX+j)}, {V(MX+j)}, {V(vTMP+8+(j^2))}, {V(vTMP+12+(j^2))}")
            p("s_barrier")
    p("s_nop 15\ns_branch L_chk")
    out, st, stats = finalize(p.items)
    return out

def build(p, cfg):
    stamp(p, 0, cfg)
    setup(p, cfg); first_loads(p, cfg); init_regs(p)
    p(f"s_mov_b32 {S(sSLOW)}, 0")
    stamp(p, 1, cfg)
    mainloop(p, cfg)
    stamp(p, 2, cfg)
    finish(p, cfg)
    return slowpath(cfg)
```

```python
from common import *

WREG = 27648; LDS_WT = 4 * WREG; PITCH = 592

class K3:
    def __init__(self, cfg, vDA, vDT, vL16, vACC, vSEL, vTRB, vOF, vX, vFA, vTMP, aP, aW, sP, sW, sWT):
        self.__dict__.update(locals())
    def addr_dma(self, p):
        T = self.vTMP
        for i in range(9):
            p(f"""
            v_add_u32 {V(T)}, {64*i}, v0
            v_mul_u32_u24 {V(T+1)}, 3641, {V(T)}
            v_lshrrev_b32 {V(T+1)}, 16, {V(T+1)}
            v_lshrrev_b32 {V(T+2)}, 4, {V(T+1)}
            v_mul_u32_u24 {V(T+1)}, {1152-288}, {V(T+1)}
            v_lshl_add_u32 {V(T+1)}, {V(T)}, 4, {V(T+1)}
            v_mad_u32_u24 {V(self.vDA+i)}, {V(T+2)}, {S(sT3)}, {V(T+1)}
            """)
        for i in range(5):
            p(f"""
            v_add_u32 {V(T)}, {min(64*i, 224)}, v0
            v_mul_u32_u24 {V(T+1)}, 3641, {V(T)}
            v_lshrrev_b32 {V(T+1)}, 16, {V(T+1)}
            v_lshrrev_b32 {V(T+2)}, 1, {V(T+1)}
            v_mul_u32_u24 {V(T+1)}, {1152-288}, {V(T+1)}
            v_lshl_add_u32 {V(T+1)}, {V(T)}, 4, {V(T+1)}
            v_mad_u32_u24 {V(self.vDT+i)}, {V(T+2)}, {S(sT2)}, {V(T+1)}
            """)
    def setup(self, p):
        p(f"""
        s_mov_b32 {S(sT3)}, {2*1152}
        s_mov_b32 {S(sT2)}, {16*1152}
        """)
        self.addr_dma(p)
        p(f"""
        s_lshr_b32 {S(sT0)}, {S(sS)}, 2
        s_and_b32 {S(sT1)}, {S(sS)}, 3
        s_mul_i32 {S(self.sW)}, {S(sWV)}, {144*1152}
        s_mul_i32 {S(sT2)}, {S(sT0)}, 288
        s_add_u32 {S(self.sW)}, {S(self.sW)}, {S(sT2)}
        s_lshl_b32 {S(self.sP)}, {S(sM)}, 2
        s_add_u32 {S(self.sP)}, {S(self.sP)}, {S(sT1)}
        s_lshl_b32 {S(self.sP)}, {S(self.sP)}, 2
        s_add_u32 {S(self.sP)}, {S(self.sP)}, {S(sT0)}
        s_mul_i32 {S(self.sP)}, {S(self.sP)}, {9*16*1024}
        s_lshl_b32 {S(sT2)}, {S(sWV)}, 12
        s_add_u32 {S(self.sP)}, {S(self.sP)}, {S(sT2)}
        s_add_u32 {S(self.sP)}, {S(self.sP)}, {WS_P}
        s_mul_i32 {S(self.sWT)}, {S(sWV)}, {WREG}
        s_mul_i32 {S(self.sWT+1)}, {S(sWV)}, 4608
        v_lshlrev_b32 {V(self.vL16)}, 4, v0
        """)
    def wo_dma(self, j, i, slot):
        return ([f"s_add_u32 {S(sSO)}, {S(self.sW)}, {36*1152*j}", f"s_add_u32 m0, {S(self.sWT)}, {9216*slot + 1024*i}"],
                f"buffer_load_dwordx4 {V(self.vDA+i)}, {S(sWO,4)}, {S(sSO)} offen lds")
    def wt_dma(self, i):
        return ([f"s_add_u32 {S(sSO)}, {S(self.sW)}, {16*1152}", f"s_add_u32 m0, {S(self.sWT+1)}, {LDS_WT + 16*min(64*i, 224)}"],
                f"buffer_load_dwordx4 {V(self.vDT+i)}, {S(sWO,4)}, {S(sSO)} offen lds")
    def p_load(self, nt, k):
        return ([f"s_add_u32 {S(sSO)}, {S(self.sP)}, {16384*nt}"] if k == 0 else [],
                f"buffer_load_dwordx4 {A(self.aP+16*nt+4*k,4)}, {V(self.vL16)}, {S(sWS,4)}, {S(sSO)} offen offset:{1024*k} {self.cfg['sc']}")
    def setup2(self, p):
        T = self.vTMP
        p(f"""
        v_bfe_u32 {V(T)}, v0, 2, 2
        v_lshrrev_b32 {V(T+1)}, 4, v0
        v_and_b32 {V(T+2)}, 1, v0
        v_lshlrev_b32 {V(T+2)}, 4, {V(T+2)}
        v_mov_b32 {V(T+3)}, 0x3f80
        v_lshlrev_b32 {V(T+2)}, {V(T+2)}, {V(T+3)}
        v_cmp_eq_u32 vcc, {V(T)}, {V(T+1)}
        v_cndmask_b32 {V(T+2)}, 0, {V(T+2)}, vcc
        v_and_b32 {V(T+3)}, 2, v0
        v_cmp_eq_u32 vcc, 0, {V(T+3)}
        v_cndmask_b32 {V(self.vSEL)}, 0, {V(T+2)}, vcc
        v_cndmask_b32 {V(self.vSEL+1)}, {V(T+2)}, 0, vcc
        v_lshrrev_b32 {V(T+2)}, 2, v0
        v_lshrrev_b32 {V(T+3)}, 5, v0
        v_lshl_add_u32 {V(T+3)}, {V(T+3)}, 3, {V(T+2)}
        v_and_b32 {V(T)}, 3, v0
        v_lshlrev_b32 {V(T)}, 3, {V(T)}
        v_mul_u32_u24 {V(T+3)}, 288, {V(T+3)}
        v_add3_u32 {V(self.vTRB)}, {V(T+3)}, {V(T)}, {S(self.sWT)}
        v_mul_u32_u24 {V(T+2)}, 288, {V(T+2)}
        v_add3_u32 {V(self.vTRB+1)}, {V(T+2)}, {V(T)}, {S(self.sWT+1)}
        v_add_u32 {V(self.vTRB+1)}, {LDS_WT}, {V(self.vTRB+1)}
        v_and_b32 {V(T)}, 15, v0
        v_mul_u32_u24 {V(T)}, {PITCH}, {V(T)}
        v_lshl_add_u32 {V(T)}, {V(T+1)}, 4, {V(T)}
        v_add_u32 {V(self.vTRB+2)}, {S(self.sWT)}, {V(T)}
        v_and_b32 {V(T)}, 15, v0
        v_lshlrev_b32 {V(T)}, 2, {V(T)}
        v_lshl_add_u32 {V(self.vTRB+3)}, {V(T+1)}, 10, {V(T)}
        s_lshl_b32 {S(sT3)}, {S(sWV)}, 6
        """)
        for i in range(3):
            p(f"""
            v_add_u32 {V(T)}, {S(sT3)}, v0
            v_add_u32 {V(T)}, {256*i}, {V(T)}
            v_mul_u32_u24 {V(T+1)}, 3641, {V(T)}
            v_lshrrev_b32 {V(T+1)}, 16, {V(T+1)}
            v_mul_u32_u24 {V(T+2)}, {PITCH-576}, {V(T+1)}
            v_lshl_add_u32 {V(self.vFA+i)}, {V(T)}, 5, {V(T+2)}
            v_mul_u32_u24 {V(T+2)}, {1152-288}, {V(T+1)}
            v_lshl_add_u32 {V(self.vFA+3+i)}, {V(T)}, 4, {V(T+2)}
            """)
        p(f"""
        v_cmp_lt_u32 vcc, 575, {V(T)}
        v_mov_b32 {V(T+1)}, 0x7fff0000
        v_cndmask_b32 {V(self.vFA+5)}, {V(self.vFA+5)}, {V(T+1)}, vcc
        s_lshr_b32 {S(sT0)}, {S(sS)}, 2
        s_and_b32 {S(sT1)}, {S(sS)}, 3
        s_lshl_b32 {S(sT2)}, {S(sM)}, 2
        s_add_u32 {S(sT2)}, {S(sT2)}, {S(sT1)}
        s_mul_i32 {S(self.sWT+2)}, {S(sT2)}, {32*1152}
        s_mul_i32 {S(sT0)}, {S(sT0)}, 288
        s_add_u32 {S(self.sWT+2)}, {S(self.sWT+2)}, {S(sT0)}
        s_lshl_b32 {S(self.sWT+3)}, {S(sT2)}, 15
        s_lshl_b32 {S(sT0)}, {S(sWV)}, 12
        s_add_u32 {S(self.sWT+3)}, {S(self.sWT+3)}, {S(sT0)}
        s_add_u32 {S(self.sWT+3)}, {S(self.sWT+3)}, {WS_OM}
        s_lshl_b32 {S(self.sWT+4)}, {S(sM)}, 14
        s_add_u32 {S(self.sWT+4)}, {S(self.sWT+4)}, {S(sT0)}
        s_lshl_b32 {S(sT1)}, {S(sT1)}, 7
        s_add_u32 {S(self.sWT+4)}, {S(self.sWT+4)}, {S(sT1)}
        s_add_u32 {S(self.sWT+4)}, {S(self.sWT+4)}, {WS_OT}
        """)
    def x_loads(self, p):
        for i in range(3): p(f"buffer_load_dwordx4 {V(self.vX+4*i,4)}, {V(self.vFA+3+i)}, {S(sX,4)}, {S(self.sWT+2)} offen")
    def o_loads(self, p):
        sc = self.cfg["sc"]
        p(f"s_add_u32 {S(sT0)}, {S(self.sWT+3)}, 16384")
        for k in range(4):
            for e in range(2):
                p(f"buffer_load_dwordx4 {V(self.vOF+8*k+4*e,4)}, {V(self.vL16)}, {S(sWS,4)}, {S(sT0 if e else self.sWT+3)} offen offset:{1024*k} {sc}")
        for e in range(2):
            for hh in range(2):
                p(f"buffer_load_dword {V(self.vOF+32+2*e+hh)}, {V(self.vTRB+3)}, {S(sWS,4)}, {S(self.sWT+4)} offen offset:{512*hh+64*e} {sc}")
    def acc(self, nt, e): return V(self.vACC + 8 * nt + 4 * e, 4)
    def p_mfma(self, nt, e, k):
        return f"v_mfma_f32_16x16x16_bf16 {self.acc(nt,e)}, {V(self.vSEL,2)}, {A(self.aP+16*nt+4*k+2*e,2)}, {'0' if k == 0 else self.acc(nt,e)}"
    def wfrag(self, j, nt): return self.aW(j, nt)
    def w_read(self, j, slot, nt, t):
        typ, r = self.wfrag(j, nt)
        return f"ds_read_b64_tr_b16 {typ}[{r+2*t}:{r+2*t+1}], {V(self.vTRB)} offset:{9216*slot + 8*288*t + 32*nt}"
    def wt_read(self, nt):
        typ, r = self.wfrag(4, nt)
        return f"ds_read_b64_tr_b16 {typ}[{r}:{r+1}], {V(self.vTRB+1)} offset:{32*nt}"
    def o_mfma(self, p):
        for jj in ((0, 1), (2, 3)):
            for nt in range(9):
                for e in range(2):
                    for j in jj:
                        typ, r = self.wfrag(j, nt)
                        p(f"v_mfma_f32_16x16x32_bf16 {self.acc(nt,e)}, {typ}[{r}:{r+3}], {V(self.vOF+8*j+4*e,4)}, {self.acc(nt,e)}")
        q = []
        for nt in range(9):
            for e in range(2):
                typ, r = self.wfrag(4, nt)
                p(f"v_mfma_f32_16x16x16_bf16 {self.acc(nt,e)}, {typ}[{r}:{r+1}], {V(self.vOF+32+2*e,2)}, {self.acc(nt,e)}")
                q.append(f"ds_write_b128 {V(self.vTRB+2)}, {self.acc(nt,e)} offset:{16*PITCH*e + 64*nt}")
                if len(q) > 5: p(q.pop(0))
        for w in q: p(w)
    def final(self, p):
        T = self.vACC
        p("s_waitcnt lgkmcnt(0)\ns_barrier")
        for i in range(3):
            if i == 2: p(f"s_cmp_lg_u32 {S(sWV)}, 0\ns_cbranch_scc1 L_fin")
            R = T + 32 * (i & 1)
            p(f"v_add_u32 {V(self.vTMP)}, {2*WREG}, {V(self.vFA+i)}")
            for src in range(4):
                for u in range(2):
                    p(f"ds_read_b128 {V(R+8*src+4*u,4)}, {V(self.vFA+i) if src < 2 else V(self.vTMP)} offset:{WREG*(src&1) + 16*u}")
            if i == 0: continue
            for ii in ((0, 1) if i == 1 else (2,)):
                R = T + 32 * (ii & 1); X = self.vX + 4 * ii; U = T + 64
                for k in range(4):
                    p(f"v_lshlrev_b32 {V(U+2*k)}, 16, {V(X+k)}\nv_and_b32 {V(U+2*k+1)}, 0xffff0000, {V(X+k)}")
                for src in range(4):
                    for k in range(4): p(f"v_pk_add_f32 {V(U+2*k,2)}, {V(U+2*k,2)}, {V(R+8*src+2*k,2)}")
                if self.cfg.get("perturb") and ii == 2: p(f"v_add_f32 {V(U)}, {self.cfg['perturb']}, {V(U)}")
                for k in range(4): p(f"v_cvt_pk_bf16_f32 {V(X+k)}, {V(U+2*k)}, {V(U+2*k+1)}")
                p(f"buffer_store_dwordx4 {V(X,4)}, {V(self.vFA+3+ii)}, {S(sOUT,4)}, {S(self.sWT+2)} offen")
        p("L_fin:")

def build(p, cfg):
    def aW(j, nt):
        if j < 3: return ("a", 144 + 36 * j + 4 * nt)
        if j == 3: return ("v", 160 + 4 * nt)
        return ("v", 196 + 2 * nt)
    k = K3(cfg, vDA=1, vDT=10, vL16=15, vACC=16, vSEL=88, vTRB=90, vOF=96, vX=132, vFA=144, vTMP=150, aP=0, aW=aW, sP=61, sW=62, sWT=63)
    stamp(p, 0, cfg)
    k.setup(p)
    def emit(x, tag=None):
        for s_ in x[0]: p(s_)
        p(x[1], tag)
    for i in range(9): emit(k.wo_dma(0, i, 0), "w0")
    for nt in range(9):
        for kk in range(4): emit(k.p_load(nt, kk), "pl")
    for i in range(9): emit(k.wo_dma(1, i, 1), "w1")
    k.setup2(p)
    p("WAIT vm:w0")
    for nt in range(9):
        for t in range(2): p(k.w_read(0, 0, nt, t))
    for i in range(9): emit(k.wo_dma(2, i, 2), "w2")
    p("s_waitcnt lgkmcnt(0)")
    for i in range(9): emit(k.wo_dma(3, i, 0), "w3")
    stamp(p, 1, cfg)
    for nt in range(9):
        for e in range(2):
            for kk in range(4): p(k.p_mfma(nt, e, kk))
    for i in range(5): emit(k.wt_dma(i), "wt")
    k.o_loads(p); k.x_loads(p)
    for j, slot in ((1, 1), (2, 2), (3, 0)):
        p(f"WAIT vm:w{j}")
        for nt in range(9):
            for t in range(2): p(k.w_read(j, slot, nt, t))
    p("WAIT vm:wt")
    for nt in range(9): p(k.wt_read(nt))
    stamp(p, 2, cfg)
    p("s_waitcnt lgkmcnt(0)")
    k.o_mfma(p)
    stamp(p, 3, cfg)
    k.final(p)
```

```python
from asmfw import Ins

class Task:
    __slots__ = ("text", "typ", "deps", "earliest", "deadline", "prio", "gap", "tag", "cost", "seq")
    _n = 0
    def __init__(self, text, typ, deps=(), earliest=0, deadline=None, prio=5, tag=None, cost=None):
        self.text = text; self.typ = typ; self.deps = [d for d in deps if d is not None]
        self.earliest = earliest; self.deadline = deadline; self.prio = prio; self.tag = tag
        self.gap = None; self.cost = cost if cost is not None else (8 if typ == "t" else 4)
        Task._n += 1; self.seq = Task._n

class Sched:
    def __init__(self, budget=8):
        self.mf = []; self.tasks = []; self.fixed = {}; self.budget = budget; self.gapbudget = {}
    def mfma(self, text, budget=None):
        self.mf.append(text)
        if budget is not None: self.gapbudget[len(self.mf) - 1] = budget
        return len(self.mf) - 1
    def task(self, *a, **k):
        t = Task(*a, **k); self.tasks.append(t); return t
    def run(self, maxds=1, verbose=False):
        n = len(self.mf)
        pend = list(self.tasks)
        gaps = [dict(s=[], m=[], v=[]) for _ in range(n)]
        over = 0
        def ready(t, g):
            if t.earliest > g: return False
            for d in t.deps:
                dist = 1
                if isinstance(d, tuple): d, dist = d
                if d.gap is None: return False
                if dist == 1 and d.typ == "v" and t.typ in ("v", "t"): dist = 0
                if dist == 1 and d.typ == "s" and t.typ == "s": dist = 0
                if d.gap + dist > g: return False
            return True
        def used(G):
            return 4 * max(0, len(G["s"]) - 1) + sum(t.cost for t in G["m"]) + sum(t.cost for t in G["v"])
        def place(t, g):
            t.gap = g; gaps[g]["s" if t.typ == "s" else ("m" if t.typ == "m" else "v")].append(t)
        def force(t, g):
            for d in t.deps:
                if isinstance(d, tuple): d = d[0]
                if d.gap is None: force(d, g)
            assert t.earliest <= g, f"deadline before earliest: {t.text} g={g} earliest={t.earliest}"
            t.gap = g; gaps[g].setdefault("x", []).append(t)
        for g in range(n):
            G = gaps[g]; B = self.gapbudget.get(g, self.budget)
            pend.sort(key=lambda t: (0 if (t.deadline is not None and t.deadline <= g) else 1, t.prio, t.deadline if t.deadline is not None else 1 << 30, t.seq))
            progress = True
            while progress:
                progress = False
                for t in pend:
                    if t.gap is not None or not ready(t, g): continue
                    urgent = t.deadline is not None and t.deadline <= g
                    if t.typ == "s":
                        if len(G["s"]) >= 1 and not urgent: continue
                    elif t.typ == "m":
                        isds = t.text.startswith("ds_read")
                        if isds and sum(1 for x in G["m"] if x.text.startswith("ds_read")) >= maxds and not (t.deadline is not None and t.deadline <= g + 1): continue
                        if used(G) + t.cost > B and not urgent: continue
                    else:
                        if used(G) + t.cost > B and not urgent: continue
                    place(t, g); progress = True
                    break
            for t in pend:
                if t.gap is None and t.deadline is not None and t.deadline <= g: force(t, g)
            pend = [t for t in pend if t.gap is None]
            u = used(G) + sum(t.cost for t in G.get("x", []))
            if u > B:
                over += u - B
                if verbose: print(f"   gap {g}: over by {u-B}")
        out = []
        for g in range(n):
            out.append(Ins(self.mf[g]))
            for k in ("s", "m", "v", "x"):
                for t in gaps[g].get(k, []): out.append(Ins(t.text, t.tag))
        left = sorted(pend, key=lambda t: t.seq)
        self.gapstart = None
        self.gaps = gaps; self.over = over
        return out, left
```

```python
import sys, importlib
from common import *
import k1

NAME = "parallel_sum__mha_block__glu_gated_geglu__prompt"
def dump_stamps(p, cfg, kidx):
    if not cfg.get("stamps"): return
    p("s_memtime s[98:99]\ns_memrealtime s[100:101]\ns_waitcnt lgkmcnt(0)")
    p(f"s_lshl_b32 {S(sT0)}, s2, 2\ns_add_u32 {S(sT0)}, {S(sT0)}, {S(sWV)}\ns_lshl_b32 {S(sT0)}, {S(sT0)}, 8\ns_add_u32 {S(sT0)}, {S(sT0)}, {WS_TS + kidx*262144}")
    for i in range(9): p(f"v_writelane_b32 v255, s{84+2*i}, {i}")
    p(f"v_lshlrev_b32 v1, 2, v0\nbuffer_store_dword v255, v1, {S(sWS,4)}, {S(sT0)} offen")

def kernel(name, items, extra=()):
    return f".globl {name}\n.p2align 8\n.type {name},@function\n{name}:\n" + text_of(items) + text_of(list(extra))

def build(cfg):
    ks = []; launches = []
    p = Prog(); prologue(p, "L_k1_end"); p.extend(k1.build(cfg)); dump_stamps(p, cfg, 0)
    out, st, stats = finalize(p.items, verbose="k1" if cfg.get("verbose") else None)
    out, tail = k1.expand_B(out)
    ks.append(("k1_kernel", out + [Ins("L_k1_end:"), Ins("s_endpgm")], tail))
    if cfg.get("upto", 3) >= 2:
        import k2
        p = Prog(); prologue(p, "L_k2_end"); extra = k2.build(p, cfg); dump_stamps(p, cfg, 1)
        out, st, stats = finalize(p.items, verbose="k2" if cfg.get("verbose") else None)
        ks.append(("k2_kernel", out + [Ins("L_k2_end:"), Ins("s_endpgm")], extra))
    if cfg.get("upto", 3) >= 3:
        import k3
        p = Prog(); prologue(p, "L_k3_end"); k3.build(p, cfg); dump_stamps(p, cfg, 2)
        out, st, stats = finalize(p.items, verbose="k3" if cfg.get("verbose") else None)
        ks.append(("k3_kernel", out + [Ins("L_k3_end:"), Ins("s_endpgm")], []))
    for i in range(cfg.get("empty", 0)): ks.append((f"e{i}_kernel", [Ins("s_endpgm")], []))
    s = "".join(f"; @launch kernel={n} grid=(256,1,1) block=(256,1,1) lds={LDS_BYTES}\n" for n, _, _ in ks)
    s += '.amdgcn_target "amdgcn-amd-amdhsa--gfx950"\n.text\n'
    for n, it, ex in ks: s += kernel(n, it, ex)
    s += '.section .rodata,"a"\n'
    for n, _, _ in ks: s += ".p2align 6\n" + kdesc(n)
    return s

if __name__ == "__main__":
    cfg = dict(sc="")
    out = sys.argv[1]
    for a in sys.argv[2:]:
        k, v = a.split("=", 1); cfg[k] = int(v) if v.lstrip("-").isdigit() else v
    open(out, "w").write(build(cfg))
```

```python
from asmfw import *
from sched import *

def V(a, n=1): return f"v{a}" if n == 1 else f"v[{a}:{a+n-1}]"
def A(a, n=1): return f"a{a}" if n == 1 else f"a[{a}:{a+n-1}]"
def S(a, n=1): return f"s{a}" if n == 1 else f"s[{a}:{a+n-1}]"

WS_QK = 0
QK_SEC = 2359296; QK_PAIR = 147456; QK_T = 2304
WS_VT = 2 * QK_SEC
VT_HEAD = 81920; VT_T = 1280; VT_G = 320
WS_OM = WS_VT + 32 * VT_HEAD
WS_OT = WS_OM + 16 * 8 * 16 * 1024
WS_FL = WS_OT + 16 * 16 * 1024
WS_P = WS_FL + 256 * 1024
WS_END = WS_P + 16 * 4 * 36 * 16 * 1024
WS_TS = WS_END
assert WS_OM % 1024 == 0 and WS_P % 1024 == 0

import os
WS_BASE = int(os.environ.get("WS_BASE", "0"))
WS_SIZE = 0x10000000 - WS_BASE
sX, sWQ, sWG, sWU, sWD, sWS, sWH, sOUT, sWO, sDBG, sWQB, sWSB = 4, 8, 12, 16, 20, 24, 28, 32, 36, 40, 44, 48
sM, sS, sWV, sLW = 52, 53, 54, 55
sT0, sT1, sT2, sT3 = 56, 57, 58, 59
sSO = 60

SLOT = 36864
LDS_X = 4 * SLOT
LDS_BYTES = 163840

def srd(p, dst, src, nbytes):
    p(f"s_mov_b32 {S(dst)}, {S(src)}\ns_and_b32 {S(dst+1)}, {S(src+1)}, 0xffff\ns_mov_b32 {S(dst+2)}, {nbytes}\ns_mov_b32 {S(dst+3)}, 0x20000")

def prologue(p, exit_label):
    p(f"""
    s_cmp_ge_u32 s2, 256
    s_cbranch_scc1 {exit_label}
    s_load_dwordx8 s[64:71], s[0:1], 0
    s_load_dwordx8 s[72:79], s[0:1], 32
    s_load_dwordx4 s[80:83], s[0:1], 64
    v_lshrrev_b32 v1, 6, v0
    v_and_b32 v0, 63, v0
    s_and_b32 {S(sT0)}, s2, 7
    s_lshr_b32 {S(sT1)}, s2, 3
    v_readfirstlane_b32 {S(sWV)}, v1
    s_lshl_b32 {S(sT0)}, {S(sT0)}, 1
    s_and_b32 {S(sS)}, {S(sT1)}, 1
    s_add_u32 {S(sS)}, {S(sS)}, {S(sT0)}
    s_lshr_b32 {S(sM)}, {S(sT1)}, 1
    s_lshl_b32 {S(sLW)}, {S(sWV)}, 10
    s_waitcnt lgkmcnt(0)
    """)
    srd(p, sX, 64, 2359296)
    srd(p, sWQ, 66, 1990656)
    srd(p, sWO, 68, 663552)
    srd(p, sWG, 72, 5308416)
    srd(p, sWU, 74, 5308416)
    srd(p, sWD, 76, 5308416)
    srd(p, sOUT, 78, 2359296)
    srd(p, sDBG, 80, 256)
    if WS_BASE: p(f"s_add_u32 s82, s82, {WS_BASE}\ns_addc_u32 s83, s83, 0")
    srd(p, sWS, 82, WS_SIZE)

def kdesc(name, nfv=512, acc=256):
    return f""".amdhsa_kernel {name}
  .amdhsa_next_free_vgpr {nfv}
  .amdhsa_next_free_sgpr 102
  .amdhsa_accum_offset {acc}
  .amdhsa_group_segment_fixed_size 0
  .amdhsa_kernarg_size 80
  .amdhsa_user_sgpr_count 2
  .amdhsa_user_sgpr_kernarg_segment_ptr 1
  .amdhsa_system_sgpr_workgroup_id_x 1
.end_amdhsa_kernel
"""

def stamp(p, idx, cfg):
    if cfg.get("stamps"):
        p(f"s_memtime s[{84+2*idx}:{85+2*idx}]")
```

```python
import re

TRANS = ("v_exp_f32", "v_log_f32", "v_rcp_f32", "v_rsq_f32", "v_sqrt_f32", "v_sin_f32", "v_cos_f32", "v_rcp_iflag_f32")
PASSES = {
    "v_mfma_f32_16x16x32_bf16": 4, "v_mfma_f32_16x16x16_bf16": 4,
    "v_mfma_f32_32x32x16_bf16": 8, "v_mfma_f32_32x32x8_bf16": 8,
    "v_mfma_f32_32x32x4_2b_bf16": 16, "v_smfmac_f32_32x32x32_bf16": 8,
}
D2USE = {2: 5, 4: 8, 8: 12, 16: 20}
D2COV = {2: 4, 4: 6, 8: 10, 16: 18}
CWAR = {2: 1, 4: 3, 8: 7, 16: 15}

_reg = re.compile(r"^(-|abs\()?([vas])(\d+)\)?$")
_rng = re.compile(r"^(-|abs\()?([vas])\[(\d+):(\d+)\]\)?$")

def regs_of(tok):
    tok = tok.strip()
    m = _reg.match(tok)
    if m: return [(m.group(2), int(m.group(3)))]
    m = _rng.match(tok)
    if m: return [(m.group(2), i) for i in range(int(m.group(3)), int(m.group(4)) + 1)]
    if tok == "vcc": return [("s", "vcc")]
    if tok == "exec": return [("s", "exec")]
    if tok == "m0": return [("s", "m0")]
    return []

class Ins:
    __slots__ = ("text", "op", "kind", "rd", "wr", "tag", "ops", "mods", "srcC", "dst", "ab", "note")
    def __init__(self, text, tag=None):
        self.text = text; self.tag = tag; self.note = None
        t = text.split(";")[0].strip()
        self.srcC = []; self.dst = []; self.ab = []
        if t.endswith(":") or t.startswith("."):
            self.op = t; self.kind = "label"; self.rd = []; self.wr = []; self.ops = []; self.mods = ""; return
        parts = t.split(None, 1)
        op = parts[0]; rest = parts[1] if len(parts) > 1 else ""
        for suf in ("_e32", "_e64", "_dpp", "_sdwa"):
            if op.endswith(suf): op = op[:-len(suf)]
        self.op = op
        toks = [x.strip() for x in rest.split(",")] if rest else []
        mods = ""
        if "quad_perm" in rest or "op_sel" in rest or "neg_" in rest:
            m = re.search(r"\s(quad_perm|op_sel|neg_lo|neg_hi)", rest)
            mods = rest[m.start():]; toks = [x.strip() for x in rest[:m.start()].split(",")]
        if toks:
            last = toks[-1].split(None, 1)
            if len(last) > 1: toks[-1] = last[0]; mods = last[1] + " " + mods
        self.ops = toks; self.mods = mods
        R = [regs_of(x) for x in toks]
        flat = lambda L: [r for l in L for r in l]
        rd, wr = [], []
        if op.startswith("v_mfma") or op.startswith("v_smfmac"):
            self.kind = "mfma"; wr = R[0]; self.dst = R[0]
            if op.startswith("v_smfmac"):
                self.srcC = R[0]; self.ab = R[1] + R[2] + R[3]
            else:
                self.srcC = R[3]; self.ab = R[1] + R[2]
            rd = self.ab + self.srcC
        elif op.startswith("v_"):
            self.kind = "valu"
            if op.startswith("v_cmp"):
                wr = R[0]; rd = flat(R[1:])
                if op.startswith("v_cmpx"): wr = wr + [("s", "exec")]
            elif op in ("v_add_co_u32", "v_sub_co_u32", "v_addc_co_u32", "v_subb_co_u32", "v_mad_u64_u32"):
                wr = R[0] + R[1]; rd = flat(R[2:])
            elif op.startswith("v_permlane") and op.endswith("swap_b32"):
                wr = R[0] + R[1]; rd = R[0] + R[1]
            elif op in ("v_fmac_f32", "v_dot2c_f32_bf16", "v_writelane_b32"):
                wr = R[0]; rd = flat(R)
            elif op == "v_nop": pass
            else:
                wr = R[0]; rd = flat(R[1:])
            if "row_" in mods or "quad_perm" in mods or "wave_" in mods:
                self.note = "dpp"
                if "bound_ctrl" not in mods or True: rd = rd + R[0]
        elif op.startswith("ds_"):
            self.kind = "ds"
            if op.startswith("ds_read") or op.startswith("ds_bpermute") or op.startswith("ds_permute") or op.startswith("ds_swizzle") or "_rtn" in op:
                wr = R[0]; rd = flat(R[1:])
            else:
                rd = flat(R)
        elif op.startswith("buffer_") or op.startswith("global_"):
            self.kind = "vmem"
            if op in ("buffer_wbl2", "buffer_inv"): pass
            elif "load" in op:
                if " lds" in (" " + mods): rd = flat(R) + [("s", "m0")]; self.note = "dma"
                else: wr = R[0]; rd = flat(R[1:])
            elif "atomic" in op:
                rd = flat(R)
                if "sc0" in mods: wr = R[0]
            else:
                rd = flat(R); self.note = "store"
        elif op.startswith("s_load") or op.startswith("s_memtime") or op.startswith("s_memrealtime") or op.startswith("s_buffer_load"):
            self.kind = "smem"; wr = R[0]; rd = flat(R[1:])
        elif op == "WAIT":
            self.kind = "pwait"
        elif op == "s_waitcnt": self.kind = "wait"
        elif op == "s_nop": self.kind = "nop"
        elif op == "s_barrier": self.kind = "barrier"
        elif op.startswith("s_cbranch") or op in ("s_branch", "s_endpgm", "s_setpc_b64"):
            self.kind = "branch"; rd = flat(R)
        elif op.startswith("s_"):
            self.kind = "salu"
            if op.startswith("s_cmp") or op in ("s_setprio", "s_sleep", "s_bitcmp0_b32", "s_bitcmp1_b32"): rd = flat(R)
            elif "saveexec" in op: wr = R[0] + [("s", "exec")]; rd = flat(R[1:]) + [("s", "exec")]
            elif op in ("s_addk_i32", "s_mulk_i32"): wr = R[0]; rd = R[0]
            else: wr = R[0]; rd = flat(R[1:])
        else:
            raise ValueError("unknown op: " + text)
        self.rd = rd; self.wr = wr

    @property
    def ws(self):
        if self.kind == "nop": return int(self.ops[0]) + 1
        if self.kind == "label": return 0
        return 1

class State:
    def __init__(self):
        self.vm = []
        self.lg = []
        self.hist = []
    def copy(self):
        s = State(); s.vm = list(self.vm); s.lg = list(self.lg); s.hist = list(self.hist); return s

def need_ws(prev, cur):
    n = 0
    pw = set(prev.wr); cr = set(cur.rd); cw = set(cur.wr)
    if prev.kind == "mfma":
        p = PASSES[prev.op]
        if cur.kind == "mfma":
            if pw & set(cur.ab): n = max(n, D2USE[p])
            if pw & set(cur.srcC):
                if prev.dst == cur.srcC and cur.op == prev.op: n = max(n, 2 if p == 2 else 0)
                else: n = max(n, D2COV[p])
            elif pw & cw and not (prev.dst == cur.dst and cur.op == prev.op):
                n = max(n, D2COV[p])
        elif cur.kind in ("valu", "ds", "vmem"):
            if pw & (cr | cw): n = max(n, D2USE[p])
        if cur.kind == "valu" and set(prev.srcC) & cw: n = max(n, CWAR[p])
    elif prev.kind == "valu":
        pv = {r for r in pw if r[0] != "s"}; ps = {r for r in pw if r[0] == "s"}
        isdot = prev.op.startswith("v_dot")
        if cur.kind == "mfma":
            if pv & cr: n = max(n, 3 if isdot else 2)
            if ("s", "exec") in ps: n = max(n, 4)
        if cur.kind == "valu":
            if prev.op in TRANS and pv & cr: n = max(n, 1)
            if cur.note == "dpp" and pv & cr: n = max(n, 2)
            if cur.note == "dpp" and ("s", "exec") in ps: n = max(n, 5)
            if cur.op.startswith("v_permlane") and pv & cr: n = max(n, 2)
            if cur.op in ("v_readlane_b32", "v_readfirstlane_b32") and pv & cr: n = max(n, 1)
            if ps & cr: n = max(n, 4 if cur.op in ("v_readlane_b32", "v_writelane_b32") else 2)
            if ("s", "exec") in ps and (cur.op in ("v_readlane_b32", "v_readfirstlane_b32", "v_writelane_b32") or cur.op.startswith("v_permlane")): n = max(n, 4)
            if isdot and pv & (cr | cw):
                if cur.op == prev.op:
                    ab = set(regs_of(cur.ops[1]) + regs_of(cur.ops[2]))
                    if pv & ab: n = max(n, 3)
                else: n = max(n, 3)
        if cur.kind in ("vmem", "ds"):
            if ps & cr and cur.kind == "vmem": n = max(n, 5)
            if isdot and pv & cr: n = max(n, 3)
        if cur.kind in ("salu", "branch", "smem") and ps & cr: n = max(n, 1)
        if cur.kind == "branch" and ((("s", "vcc") in ps and "vcc" in cur.op) or (("s", "exec") in ps and "exec" in cur.op)): n = max(n, 1)
    elif prev.kind == "salu":
        if ("s", "m0") in pw and cur.note == "dma": n = max(n, 1)
    elif prev.kind == "vmem" and prev.note == "store" and ("x4" in prev.op or "x3" in prev.op):
        data = set(regs_of(prev.ops[0] if prev.op.startswith("buffer") else prev.ops[1]))
        if data & cw: n = max(n, 2)
    return n

class Prog:
    def __init__(self):
        self.items = []
        self.auto = {"nop": 0, "wait": 0}
        self.log = []
    def __call__(self, text, tag=None):
        for line in text.strip().split("\n"):
            line = line.strip()
            if not line or line.startswith(";"): continue
            self.items.append(Ins(line, tag))
        return self
    def add(self, ins): self.items.append(ins)
    def extend(self, other): self.items.extend(other.items if isinstance(other, Prog) else other)

def _apply_wait(st, vm=None, lg=None):
    if vm is not None and len(st.vm) > vm: st.vm = st.vm[len(st.vm) - vm:] if vm else []
    if lg is not None:
        if any(x[2] for x in st.lg):
            if lg == 0: st.lg = []
        elif len(st.lg) > lg: st.lg = st.lg[len(st.lg) - lg:] if lg else []

def _wait_text(vm, lg):
    p = []
    if vm is not None: p.append(f"vmcnt({min(vm, 63)})")
    if lg is not None: p.append(f"lgkmcnt({min(lg, 15)})")
    return "s_waitcnt " + " ".join(p)

def _needed(st, ins):
    vm = lg = None
    if ins.kind == "pwait":
        for spec in ins.ops:
            c, tag = spec.split(":")
            q = st.vm if c == "vm" else st.lg
            idx = [i for i, x in enumerate(q) if x[1] == tag or tag == "*"]
            if idx:
                n = len(q) - 1 - idx[-1]
                if c == "lg" and any(x[2] for x in q): n = 0
                if c == "vm": vm = n if vm is None else min(vm, n)
                else: lg = n if lg is None else min(lg, n)
        return vm, lg
    touched = set(ins.rd) | set(ins.wr)
    for i, x in enumerate(st.vm):
        if touched & set(x[0]): vm = len(st.vm) - 1 - i
    for i, x in enumerate(st.lg):
        if touched & set(x[0]):
            lg = 0 if any(y[2] for y in st.lg) else len(st.lg) - 1 - i
    return vm, lg

def _step(st, ins, out, stats, forced=None, record=None):
    if ins.kind == "label":
        out.append(ins); return
    vm, lg = _needed(st, ins)
    if forced:
        if forced[0] is not None: vm = forced[0] if vm is None else min(vm, forced[0])
        if forced[1] is not None: lg = forced[1] if lg is None else min(lg, forced[1])
    if ins.kind == "pwait":
        if record is not None: record.append((vm, lg, 0))
        if vm is not None or lg is not None:
            if vm is not None: vm = min(vm, 63)
            if lg is not None: lg = min(lg, 15)
            w = Ins(_wait_text(vm, lg)); out.append(w); st.hist.append(w); _apply_wait(st, vm, lg)
        return
    if vm is not None or lg is not None:
        if vm is not None: vm = min(vm, 63)
        if lg is not None: lg = min(lg, 15)
        w = Ins(_wait_text(vm, lg) + " ; auto"); out.append(w); st.hist.append(w); _apply_wait(st, vm, lg)
        stats.append(("wait", ins.text))
    need = 0; dist = 0
    for p in reversed(st.hist):
        r = need_ws(p, ins) - dist
        if r > need: need = r
        dist += p.ws
        if dist > 24: break
    if forced: need = max(need, forced[2])
    if record is not None: record.append((vm, lg, need))
    if need > 0:
        stats.append(("nop", f"{need} before {ins.text}"))
        k = need
        while k > 0:
            j = min(k, 16); w = Ins(f"s_nop {j-1} ; auto"); out.append(w); st.hist.append(w); k -= j
    out.append(ins); st.hist.append(ins)
    if len(st.hist) > 64: st.hist = st.hist[-40:]
    if ins.kind == "wait":
        t = ins.text.split(";")[0]
        m = re.search(r"vmcnt\((\d+)\)", t); m2 = re.search(r"lgkmcnt\((\d+)\)", t)
        _apply_wait(st, int(m.group(1)) if m else None, int(m2.group(1)) if m2 else None)
    elif ins.kind == "vmem":
        st.vm.append(([] if ins.tag == "touch" else ins.wr, ins.tag))
        assert len(st.vm) <= 63, "vmcnt overflow at " + ins.text
    elif ins.kind == "ds": st.lg.append((ins.wr, ins.tag, False))
    elif ins.kind == "smem": st.lg.append((ins.wr, ins.tag, True))

class Loop:
    def __init__(self, body): self.body = body

def finalize(items, st=None, verbose=None):
    st = st or State(); out = []; stats = []
    for it in items:
        if isinstance(it, Loop):
            body = it.body.items if isinstance(it.body, Prog) else it.body
            forced = [None] * len(body)
            for rnd in range(6):
                s = st.copy(); changed = False
                for rep in range(3):
                    for i, ins in enumerate(body):
                        rec = []
                        _step(s, ins, [], [], forced[i], rec)
                        if rec and rec[0] != (forced[i] or (None, None, 0)):
                            forced[i] = rec[0]; changed = True
                if not changed: break
            else: raise RuntimeError("loop waits did not converge")
            s1 = st.copy()
            for i, ins in enumerate(body): _step(s1, ins, out, stats, forced[i])
            s2 = s1.copy()
            for i, ins in enumerate(body): _step(s2, ins, [], [], forced[i])
            if [x[0] for x in s1.vm] != [x[0] for x in s2.vm] and verbose: print("note: loop exit vm state differs 1 vs 2 iterations", len(s1.vm), len(s2.vm))
            st = s2
        else:
            _step(st, it, out, stats)
    if verbose:
        for k, t in stats: print(f"  [{verbose}] auto {k}: {t}")
    return out, st, stats

def text_of(out):
    return "\n".join((i.text if i.kind == "label" else "    " + i.text) for i in out) + "\n"
```

```python
from common import *
import k1

vL16 = k1.vPS
vQM, vQT, vT = 40, 56, 60
vKM, vKT, vVA, vIDX, vQA, vQB, vPOLL, vF1 = 64, 65, 66, 67, 68, 69, 70, 71
vDA, vDT = 104, 113
vOMA, vOTA, vCW, vCR = 118, 119, 120, 121
vFA, vSEL, vTRB = 122, 128, 130
vFW, vFR = 134, 135
vO = [72, 88, 16, 232]
vS = 168
vFT = 136
vMX = 32
vC = 248
aK, aV, aP = 64, 80, 112
vACC, vOF, vX, vWT = 168, 40, 76, 136
sKO, sVO, sCNT, sKO0, sVO0, sSLOW, sOMO, sOTO = 61, 62, 63, 64, 67, 68, 69, 70
sQO = 73
sP, sW, sWT = 71, 75, 76
sF2W, sF3W, sFR = 81, 83, 84
sU0, sU1, sU2, sU3 = 88, 89, 90, 91
LDS_C = 129024; LDS_F = LDS_C + 24576
WREG = 27648; LDS_WT = 4 * WREG; PITCH = 592
FL2, FL3 = WS_FL, WS_FL + 4096
OOB = "0x7fff0000"

def flag_offsets(p, d2, d3, t0, t1):
    p(f"""
    s_lshl_b32 {S(t0)}, {S(sM)}, 8
    s_lshl_b32 {S(t1)}, {S(sS)}, 3
    s_add_u32 {S(t0)}, {S(t0)}, {S(t1)}
    s_lshr_b32 {S(t1)}, {S(sWV)}, 1
    s_lshl_b32 {S(d2)}, {S(t1)}, 7
    s_lshl_b32 {S(d3)}, {S(t1)}, 2
    s_add_u32 {S(d2)}, {S(d2)}, {S(t0)}
    s_add_u32 {S(d3)}, {S(d3)}, {S(t0)}
    s_and_b32 {S(t1)}, {S(sWV)}, 1
    s_lshl_b32 {S(t0)}, {S(t1)}, 2
    s_add_u32 {S(d2)}, {S(d2)}, {S(t0)}
    s_lshl_b32 {S(t0)}, {S(t1)}, 7
    s_add_u32 {S(d3)}, {S(d3)}, {S(t0)}
    s_add_u32 {S(d2)}, {S(d2)}, {FL2}
    s_add_u32 {S(d3)}, {S(d3)}, {FL3}
    """)

def clear_flags(p):
    flag_offsets(p, sU0, sU1, sU2, sU3)
    p(f"v_mov_b32 v26, {OOB}\nv_mov_b32 v27, 0\nv_writelane_b32 v26, 0, 0")
    p(f"buffer_store_dword v27, v26, {S(sWS,4)}, {S(sU0)} offen sc1", "qkvst")
    p(f"buffer_store_dword v27, v26, {S(sWS,4)}, {S(sU1)} offen sc1", "qkvst")

def setup_att(p):
    c = vC
    p(f"""
    s_lshr_b32 {S(sU0)}, {S(sWV)}, 1
    s_and_b32 {S(sU1)}, {S(sWV)}, 1
    s_mul_i32 {S(sU2)}, {S(sU0)}, {5*256}
    s_lshl_b32 {S(sU3)}, {S(sU0)}, 2
    s_add_u32 {S(sU3)}, {S(sU3)}, 1024
    v_lshrrev_b32 {V(c)}, 5, v0
    v_lshlrev_b32 {V(c+1)}, 9, {V(c)}
    v_add_u32 {V(c+1)}, {S(sU2)}, {V(c+1)}
    v_mul_u32_u24 {V(c+2)}, {QK_T}, {V(c)}
    v_add_u32 {V(c+2)}, {S(sU3)}, {V(c+2)}
    v_and_b32 {V(c+3)}, 15, v0
    v_bfe_u32 {V(c+4)}, v0, 4, 1
    v_lshl_add_u32 {V(c+5)}, {V(c+3)}, 1, {V(c+4)}
    v_lshl_add_u32 {V(vQA)}, {V(c+5)}, 3, {V(c+1)}
    v_lshl_add_u32 {V(vQB)}, {V(c+5)}, 3, {V(c+2)}
    v_lshlrev_b32 {V(c+4)}, 14, {V(c+4)}
    v_lshl_add_u32 {V(c+4)}, {V(c)}, 8, {V(c+4)}
    v_lshl_add_u32 {V(vOMA)}, {V(c+3)}, 4, {V(c+4)}
    v_bfe_u32 {V(c+3)}, v0, 2, 1
    v_and_or_b32 {V(c+3)}, v0, 24, {V(c+3)}
    v_and_b32 {V(c+4)}, 3, v0
    v_lshl_add_u32 {V(c+3)}, {V(c+4)}, 1, {V(c+3)}
    v_lshl_add_u32 {V(vKM)}, {V(c+3)}, 3, {V(c+1)}
    v_lshl_add_u32 {V(vKT)}, {V(c+3)}, 3, {V(c+2)}
    v_and_b32 {V(c+1)}, 31, v0
    v_mul_u32_u24 {V(c+2)}, {VT_G}, {V(c)}
    v_cmp_eq_u32 vcc, 22, {V(c+1)}
    v_mov_b32 {V(c+4)}, {OOB}
    v_lshlrev_b32 {V(vOTA)}, 2, {V(c+1)}
    v_cndmask_b32 {V(c+3)}, {V(c+1)}, 18, vcc
    v_cmp_lt_u32 vcc, 18, {V(c+3)}
    v_lshl_add_u32 {V(vVA)}, {V(c+3)}, 4, {V(c+2)}
    v_mov_b32 {V(vIDX)}, 0xdddddddd
    v_cndmask_b32 {V(vVA)}, {V(vVA)}, {V(c+4)}, vcc
    v_cmp_lt_u32 vcc, 31, v0
    v_mov_b32 {V(vT+1)}, 0x3f803f80
    v_mov_b32 {V(vT+3)}, 0x3f803f80
    v_cndmask_b32 {V(vOTA)}, {V(vOTA)}, {V(c+4)}, vcc
    v_cmp_gt_u32 vcc, 8, v0
    v_lshlrev_b32 {V(vFR)}, 2, v0
    v_mov_b32 {V(vFW)}, {OOB}
    v_cndmask_b32 {V(vFR)}, {V(c+4)}, {V(vFR)}, vcc
    v_writelane_b32 {V(vFW)}, 0, 0
    v_mov_b32 {V(vQT+1)}, 0
    v_mov_b32 {V(vQT+3)}, 0
    v_accvgpr_write_b32 {A(aV+28)}, 0
    v_accvgpr_write_b32 {A(aV+29)}, 0
    v_accvgpr_write_b32 {A(aV+30)}, 0
    v_accvgpr_write_b32 {A(aV+31)}, 0
    s_mul_i32 {S(sU2)}, {S(sS)}, {QK_PAIR}
    s_mul_i32 {S(sU3)}, {S(sU1)}, {32*QK_T}
    s_add_u32 {S(sKO0)}, {S(sU2)}, {S(sU3)}
    s_add_u32 {S(sKO0)}, {S(sKO0)}, {WS_QK+QK_SEC}
    s_lshl_b32 {S(sU3)}, {S(sM)}, 1
    s_add_u32 {S(sU3)}, {S(sU3)}, {S(sU1)}
    s_mul_i32 {S(sQO)}, {S(sU3)}, {2*QK_T}
    s_add_u32 {S(sQO)}, {S(sQO)}, {S(sU2)}
    s_xor_b32 {S(sQO+1)}, {S(sU3)}, 1
    s_mul_i32 {S(sQO+1)}, {S(sQO+1)}, {2*QK_T}
    s_add_u32 {S(sQO+1)}, {S(sQO+1)}, {S(sU2)}
    s_lshl_b32 {S(sOMO)}, {S(sU3)}, 6
    s_add_u32 {S(sOMO)}, {S(sOMO)}, {S(sS)}
    s_lshl_b32 {S(sOMO)}, {S(sOMO)}, 1
    s_add_u32 {S(sOMO)}, {S(sOMO)}, {S(sU0)}
    s_lshl_b32 {S(sOMO)}, {S(sOMO)}, 9
    s_add_u32 {S(sOMO)}, {S(sOMO)}, {WS_OM}
    s_lshl_b32 {S(sU3)}, {S(sS)}, 1
    s_add_u32 {S(sU3)}, {S(sU3)}, {S(sU0)}
    s_mul_i32 {S(sVO0)}, {S(sU3)}, {VT_HEAD}
    s_mul_i32 {S(sU3)}, {S(sU1)}, {32*VT_T}
    s_add_u32 {S(sVO0)}, {S(sVO0)}, {S(sU3)}
    s_add_u32 {S(sVO0)}, {S(sVO0)}, {WS_VT}
    s_lshl_b32 {S(sOTO)}, {S(sM)}, 4
    s_add_u32 {S(sOTO)}, {S(sOTO)}, {S(sS)}
    s_lshl_b32 {S(sOTO)}, {S(sOTO)}, 2
    s_add_u32 {S(sOTO)}, {S(sOTO)}, {S(sWV)}
    s_lshl_b32 {S(sOTO)}, {S(sOTO)}, 8
    s_add_u32 {S(sOTO)}, {S(sOTO)}, {WS_OT}
    s_mul_i32 {S(sU3)}, {S(sWV)}, 6144
    s_add_u32 {S(sU3)}, {S(sU3)}, {LDS_C}
    v_add_u32 {V(vCW)}, {S(sU3)}, {V(vL16)}
    s_xor_b32 {S(sU2)}, {S(sWV)}, 1
    s_mul_i32 {S(sU2)}, {S(sU2)}, 6144
    s_add_u32 {S(sU2)}, {S(sU2)}, {LDS_C}
    v_add_u32 {V(vCR)}, {S(sU2)}, {V(vL16)}
    s_mov_b32 {S(sKO)}, {S(sKO0)}
    s_mov_b32 {S(sVO)}, {S(sVO0)}
    s_mov_b32 {S(sSLOW)}, 0
    """)
    assert WS_QK == 0

def setup_out(p):
    T = vC
    flag_offsets(p, sF2W, sF3W, sU0, sU1)
    p(f"""
    s_lshr_b32 {S(sU0)}, {S(sS)}, 2
    s_and_b32 {S(sU1)}, {S(sS)}, 3
    s_lshl_b32 {S(sFR)}, {S(sM)}, 1
    s_lshr_b32 {S(sU2)}, {S(sU1)}, 1
    s_add_u32 {S(sFR)}, {S(sFR)}, {S(sU2)}
    s_lshl_b32 {S(sFR)}, {S(sFR)}, 2
    s_add_u32 {S(sFR)}, {S(sFR)}, {S(sWV)}
    s_lshl_b32 {S(sFR)}, {S(sFR)}, 5
    s_add_u32 {S(sFR)}, {S(sFR)}, {FL2}
    s_add_u32 {S(sFR+1)}, {S(sFR)}, {FL3-FL2}
    s_mul_i32 {S(sW)}, {S(sWV)}, {144*1152}
    s_mul_i32 {S(sU2)}, {S(sU0)}, 288
    s_add_u32 {S(sW)}, {S(sW)}, {S(sU2)}
    s_lshl_b32 {S(sU3)}, {S(sM)}, 2
    s_add_u32 {S(sU3)}, {S(sU3)}, {S(sU1)}
    s_mul_i32 {S(sWT+2)}, {S(sU3)}, {32*1152}
    s_add_u32 {S(sWT+2)}, {S(sWT+2)}, {S(sU2)}
    s_lshl_b32 {S(sP)}, {S(sU3)}, 2
    s_add_u32 {S(sP)}, {S(sP)}, {S(sU0)}
    s_mul_i32 {S(sP)}, {S(sP)}, {9*16*1024}
    s_lshl_b32 {S(sU2)}, {S(sWV)}, 12
    s_add_u32 {S(sP)}, {S(sP)}, {S(sU2)}
    s_add_u32 {S(sP)}, {S(sP)}, {WS_P}
    s_mul_i32 {S(sWT)}, {S(sWV)}, {WREG}
    s_mul_i32 {S(sWT+1)}, {S(sWV)}, 4608
    s_lshl_b32 {S(sWT+3)}, {S(sU3)}, 15
    s_add_u32 {S(sWT+3)}, {S(sWT+3)}, {S(sU2)}
    s_add_u32 {S(sWT+3)}, {S(sWT+3)}, {WS_OM}
    s_lshl_b32 {S(sWT+4)}, {S(sM)}, 14
    s_add_u32 {S(sWT+4)}, {S(sWT+4)}, {S(sU2)}
    s_lshl_b32 {S(sU1)}, {S(sU1)}, 7
    s_add_u32 {S(sWT+4)}, {S(sWT+4)}, {S(sU1)}
    s_add_u32 {S(sWT+4)}, {S(sWT+4)}, {WS_OT}
    s_mov_b32 {S(sU3)}, {2*1152}
    s_mov_b32 {S(sU2)}, {16*1152}
    s_lshl_b32 {S(sU0)}, {S(sWV)}, 6
    """)
    for i in range(14):
        main = i < 9
        p(f"""
        v_add_u32 {V(T)}, {64*i if main else min(64*(i-9), 224)}, v0
        v_mul_u32_u24 {V(T+1)}, 3641, {V(T)}
        v_lshrrev_b32 {V(T+1)}, 16, {V(T+1)}
        v_lshrrev_b32 {V(T+2)}, {4 if main else 1}, {V(T+1)}
        v_mul_u32_u24 {V(T+1)}, {1152-288}, {V(T+1)}
        v_lshl_add_u32 {V(T+1)}, {V(T)}, 4, {V(T+1)}
        v_mad_u32_u24 {V(vDA+i)}, {V(T+2)}, {S(sU3 if main else sU2)}, {V(T+1)}
        """)
    p(f"""
    v_bfe_u32 {V(T)}, v0, 2, 2
    v_lshrrev_b32 {V(T+1)}, 4, v0
    v_cmp_eq_u32 vcc, {V(T)}, {V(T+1)}
    v_and_b32 {V(T+2)}, 1, v0
    v_lshlrev_b32 {V(T+2)}, 4, {V(T+2)}
    v_mov_b32 {V(T+3)}, 0x3f80
    v_lshlrev_b32 {V(T+2)}, {V(T+2)}, {V(T+3)}
    v_cndmask_b32 {V(T+2)}, 0, {V(T+2)}, vcc
    v_and_b32 {V(T+3)}, 2, v0
    v_cmp_eq_u32 vcc, 0, {V(T+3)}
    v_lshrrev_b32 {V(T+4)}, 2, v0
    v_lshrrev_b32 {V(T+3)}, 5, v0
    v_cndmask_b32 {V(vSEL)}, 0, {V(T+2)}, vcc
    v_cndmask_b32 {V(vSEL+1)}, {V(T+2)}, 0, vcc
    v_lshl_add_u32 {V(T+3)}, {V(T+3)}, 3, {V(T+4)}
    v_and_b32 {V(T)}, 3, v0
    v_lshlrev_b32 {V(T)}, 3, {V(T)}
    v_mul_u32_u24 {V(T+3)}, 288, {V(T+3)}
    v_add3_u32 {V(vTRB)}, {V(T+3)}, {V(T)}, {S(sWT)}
    v_mul_u32_u24 {V(T+4)}, 288, {V(T+4)}
    v_add3_u32 {V(vTRB+1)}, {V(T+4)}, {V(T)}, {S(sWT+1)}
    v_add_u32 {V(vTRB+1)}, {LDS_WT}, {V(vTRB+1)}
    v_and_b32 {V(T)}, 15, v0
    v_mul_u32_u24 {V(T+2)}, {PITCH}, {V(T)}
    v_lshl_add_u32 {V(T+2)}, {V(T+1)}, 4, {V(T+2)}
    v_add_u32 {V(vTRB+2)}, {S(sWT)}, {V(T+2)}
    v_lshlrev_b32 {V(T)}, 2, {V(T)}
    v_lshl_add_u32 {V(vTRB+3)}, {V(T+1)}, 10, {V(T)}
    """)
    for i in range(3):
        p(f"v_add_u32 {V(T)}, {S(sU0)}, v0" if i == 0 else f"v_add_u32 {V(T)}, 256, {V(T)}")
        p(f"""
        v_mul_u32_u24 {V(T+1)}, 3641, {V(T)}
        v_lshrrev_b32 {V(T+1)}, 16, {V(T+1)}
        v_mul_u32_u24 {V(T+2)}, {PITCH-576}, {V(T+1)}
        v_lshl_add_u32 {V(vFA+i)}, {V(T)}, 5, {V(T+2)}
        v_mul_u32_u24 {V(T+2)}, {1152-288}, {V(T+1)}
        v_lshl_add_u32 {V(vFA+3+i)}, {V(T)}, 4, {V(T+2)}
        """)
    p(f"v_cmp_lt_u32 vcc, 575, {V(T)}\nv_mov_b32 {V(T+1)}, {OOB}\nv_nop\nv_cndmask_b32 {V(vFA+5)}, {V(vFA+5)}, {V(T+1)}, vcc")

def kld(slot, u): return (f"buffer_load_dwordx2 {A(aK+4*slot+2*u,2)}, {V(vKM)}, {S(sWS,4)}, {S(sKO)} offen offset:{256*u} sc1", f"k{slot}")
def vld(slot, i): return (f"buffer_load_dwordx4 {A(aV+8*slot+4*i,4)}, {V(vVA)}, {S(sWS,4)}, {S(sVO)} offen offset:{640*i} sc1", f"v{slot}")
def tld(st, so, tag): return (f"buffer_load_dword {V(vT+2*st)}, {V(vKT)}, {S(sWS,4)}, {S(so)} offen sc1", tag)

def first_loads(p):
    for pp in (0, 1):
        p(f"buffer_load_dword {V(vQT+2*pp)}, {V(vQB)}, {S(sWS,4)}, {S(sQO+pp)} offen sc1", f"q{pp}")
        for j in (0, 1):
            for u in (0, 1):
                p(f"buffer_load_dwordx2 {V(vQM+8*pp+4*j+2*u,2)}, {V(vQA)}, {S(sWS,4)}, {S(sQO+pp)} offen offset:{QK_T*j+256*u} sc1", f"q{pp}")
        if pp == 0:
            p(*tld(0, sKO, "k0")); p(*kld(0, 0)); p(*kld(0, 1))
    for t in range(4):
        if t:
            if t == 2: p(*tld(1, sKO, "k2"))
            p(*kld(t, 0)); p(*kld(t, 1))
        p(f"s_add_u32 {S(sKO)}, {S(sKO)}, {QK_T}")
        if t < 3:
            p(*vld(t, 0)); p(*vld(t, 1))
            p(f"s_add_u32 {S(sVO)}, {S(sVO)}, {VT_T}")

def chain(sc, items, earliest, deadline, prio, dep=(), spacing=1, state=None):
    lw, lr = state if state else ({}, {}); lastm = None; out = []
    for x in items:
        if x.op == "v_nop": continue
        typ = {"valu": "v", "salu": "s", "vmem": "m"}[x.kind]
        deps = list(dep)
        for r in x.rd:
            if r in lw: deps.append((lw[r], 2) if r == ("s", "vcc") else lw[r])
        for r in x.wr:
            if r in lw: deps.append(lw[r])
            deps += lr.get(r, [])
        if typ == "m" and lastm: deps.append((lastm, spacing))
        t = sc.task(x.text, typ, deps=deps, earliest=earliest, deadline=deadline, prio=prio, tag=x.tag); t.multi = True
        for r in x.rd: lr.setdefault(r, []).append(t)
        for r in x.wr: lw[r] = t; lr[r] = []
        if typ == "m": lastm = t
        out.append(t)
    return out

def poll_check(name, expect_mask, value):
    return [f"v_cmp_{'le' if name == 'A' else 'eq'}_u32 s[86:87], {value}, {V(vPOLL)}", "s_nop 0", f"s_cmp_eq_u32 s86, {expect_mask}", f"s_cbranch_scc0 L_spin{name}", f"L_back{name}:"]
def spin(name, load, expect_mask, value):
    p = Prog()
    p(f"""
    L_spin{name}:
    s_mov_b32 {S(sCNT)}, 0x8000
    L_spinl{name}:
    {load}
    s_waitcnt vmcnt(0)
    v_cmp_{"le" if name == "A" else "eq"}_u32 s[86:87], {value}, {V(vPOLL)}
    s_sub_u32 {S(sCNT)}, {S(sCNT)}, 1
    s_cbranch_scc1 L_back{name}
    s_cmp_eq_u32 s86, {expect_mask}
    s_cbranch_scc0 L_spinl{name}
    s_branch L_back{name}
    """)
    return p.items
F1LD = f"buffer_load_dword {V(vPOLL)}, {V(vF1)}, {S(sDBG,4)}, 0 offen sc1"
F2LD = f"buffer_load_dword {V(vPOLL)}, {V(vFR)}, {S(sWS,4)}, {S(sFR)} offen sc1"
F3LD = f"buffer_load_dword {V(vPOLL)}, {V(vFR)}, {S(sWS,4)}, {S(sFR+1)} offen sc1"

def hook(cfg):
    def h(sc, I):
        bar, ss, NG = I["bar"], I["stage_start"], I["NG"]
        g = bar[23].earliest - 1
        sc.task("WAIT vm:qkvst", "s", deps=I["qst"], earliest=g, deadline=g, prio=0)
        p = Prog()
        p(f"""
        s_and_b32 {S(sU0)}, s2, 3
        s_lshl_b32 {S(sU0)}, {S(sU0)}, 6
        s_lshl_b32 {S(sU1)}, {S(sWV)}, 16
        s_add_u32 {S(sU0)}, {S(sU0)}, {S(sU1)}
        v_lshl_add_u32 {V(vF1)}, v0, 8, {S(sU0)}
        v_mov_b32 {V(vPOLL)}, 1
        """)
        stt = ({}, {}); q = [I["qst"][-1]]
        t = chain(sc, p.items, ss[23], bar[23].earliest - 2, 6, dep=q, state=stt)
        t = sc.task(f"buffer_atomic_add {V(vPOLL)}, {V(vF1)}, {S(sDBG,4)}, 0 offen", "m", deps=t + [bar[23]], deadline=bar[23].earliest + 9, prio=2, tag="f1")
        t = sc.task(f"v_lshlrev_b32 {V(vF1)}, 6, v0", "v", deps=[(t, 2)], prio=6)
        p = Prog(); setup_att(p)
        ta = chain(sc, p.items, ss[23], ss[28] - 1, 8, dep=q, state=stt) + [t]
        p = Prog(); setup_out(p)
        to = chain(sc, p.items, ss[23], NG - 2, 8, dep=q, state=stt)
        e = ss[28] + cfg.get("f1at", 30)
        t = sc.task(F1LD, "m", deps=ta, earliest=e, deadline=e + 8, prio=2, tag="poll")
        e = ss[29] + cfg.get("f1chk", 20)
        t = sc.task("WAIT vm:poll\n" + "\n".join(poll_check("A", 15, 64)), "v", deps=[t], earliest=e, deadline=e, prio=0, cost=16)
        p = Prog(); first_loads(p)
        chain(sc, p.items, e + 1, NG - 8, 2, dep=[t], spacing=3)
        for r in list(range(vO[0], vO[0] + 32)):
            sc.task(f"v_mov_b32 {V(r)}, 0", "v", deps=I["parked"][7], prio=9)
    return h

def Tm(Y, kt, qp): return f"v_mfma_f32_32x32x4_2b_bf16 {V(Y,32)}, {V(vT+2*((kt>>1)&1),2)}, {V(vQT+2*qp,2)}, 0 cbsz:1 abid:{kt&1}"
def Mm(Y, kt, qp, j): return f"v_mfma_f32_32x32x16_bf16 {V(Y+16*j,16)}, {A(aK+4*kt,4)}, {V(vQM+8*qp+4*j,4)}, {V(Y+16*j,16)}"
def PV(X, kt, qp, j, i): return f"v_smfmac_f32_32x32x32_bf16 {V(vO[2*qp+j],16)}, {A(aV+8*kt+4*i,4)}, {V(X+16*j+8*i,8)}, {V(vIDX)}"

def wo_dma(j, i, slot):
    return ([f"s_add_u32 {S(sSO)}, {S(sW)}, {36*1152*j}"] if i == 0 else []) + [f"s_add_u32 m0, {S(sWT)}, {9216*slot + 1024*i}"], \
           (f"buffer_load_dwordx4 {V(vDA+i)}, {S(sWO,4)}, {S(sSO)} offen lds", f"w{j}")
def wt_dma(i):
    return ([f"s_add_u32 {S(sSO)}, {S(sW)}, {16*1152}"] if i == 0 else []) + [f"s_add_u32 m0, {S(sWT+1)}, {LDS_WT + 16*min(64*i, 224)}"], \
           (f"buffer_load_dwordx4 {V(vDT+i)}, {S(sWO,4)}, {S(sSO)} offen lds", "wt")
def p_load(nt, k):
    return ([f"s_add_u32 {S(sSO)}, {S(sP)}, {16384*nt}"] if k == 0 else []), \
           (f"buffer_load_dwordx4 {A(aP+16*nt+4*k,4)}, {V(vL16)}, {S(sWS,4)}, {S(sSO)} offen offset:{1024*k} sc1", "pl")

def attention(p, cfg, late):
    p("WAIT vm:k0")
    p(Tm(vS, 0, 0))
    zero = list(range(vO[2], vO[2] + 16)) + list(range(vO[3], vO[3] + 16)) + list(range(vS + 56, vS + 64))
    for r in zero[:18]: p(f"v_mov_b32 {V(r)}, 0")
    p(Mm(vS, 0, 0, 0))
    for r in zero[18:24]: p(f"v_mov_b32 {V(r)}, 0")
    p(Mm(vS, 0, 0, 1))
    for r in zero[24:]: p(f"v_mov_b32 {V(r)}, 0")
    p("WAIT vm:q1\ns_barrier")
    X_ = {}
    def put(ps, items): X_.setdefault(ps, []).extend(items)
    ex = [([so], (stt, "pst")) for so, stt in late]
    ps = 0
    for it in ex: put(ps, [it]); ps += 1
    wo = [wt_dma(i) for i in range(5)] + [wo_dma(j, i, j) for j in range(3) for i in range(9)]
    sig = ps + cfg.get("f2sig", 6); pollat = cfg.get("f2poll", 26); chk = pollat + 4
    q = ps
    for n, it in enumerate(wo): put(q + (n * (chk - q)) // len(wo), [it])
    put(sig, [(["WAIT vm:pst"], (f"buffer_store_dword {V(vT+1)}, {V(vFW)}, {S(sWS,4)}, {S(sF2W)} offen sc1", "f2"))])
    put(pollat, [([], (F2LD, "poll"))])
    pl = [p_load(nt, k) for nt in range(9) for k in range(4)]
    pend = cfg.get("plend", 60)
    for n, it in enumerate(pl): put(chk + 1 + (n * (pend - chk - 1)) // len(pl), [it])
    for ps in range(64):
        X = vS + 32 * (ps & 1); Y = vS + 32 * ((ps + 1) & 1)
        kt, qp = (ps >> 1) & 3, ps & 1; nk, nq = ((ps + 1) >> 1) & 3, (ps + 1) & 1; pk, pq = ((ps - 1) >> 1) & 3, (ps - 1) & 1
        T = ps >> 1
        after = {k: [] for k in range(7)}
        if qp == 0:
            if T + 3 < 32:
                after[0].append(vld(pk, 0)); after[2].append(vld(pk, 1))
                after[3].append((f"s_add_u32 {S(sVO)}, {S(sVO)}, {VT_T}", None))
            after[1].append((f"WAIT vm:v{kt}", None))
            after[6].append((f"WAIT vm:k{(kt+1)&3}", None))
            free = [4, 5]
        else:
            free = [3, 6]
            if T + 4 < 32:
                if kt & 1:
                    after[0].insert(0, (f"s_sub_u32 {S(sU0)}, {S(sKO)}, {QK_T}", None))
                    after[0].append(tld(kt >> 1, sU0, f"k{kt-1}"))
                    after[2].append(kld(kt, 0)); after[4].append(kld(kt, 1))
                else:
                    after[0].append(kld(kt, 0)); after[2].append(kld(kt, 1))
                after[5].append((f"s_add_u32 {S(sKO)}, {S(sKO)}, {QK_T}", None))
        items = X_.get(ps, [])
        assert len(items) <= 3, (ps, len(items))
        for n, (sal, vm) in enumerate(items):
            k = free[min(n, 1)]
            kp = k - 1 if (n == 0 or free[1] - 1 != free[0]) and n < 2 else k
            for s_ in sal: after[kp].append((s_, None))
            after[k].append(vm)
        mf = {2: PV(Y, pk, pq, 1, 1), 5: Tm(Y, nk, nq), 13: PV(X, kt, qp, 0, 0), 19: PV(X, kt, qp, 0, 1), 22: Mm(Y, nk, nq, 0), 25: Mm(Y, nk, nq, 1), 28: PV(X, kt, qp, 1, 0)}
        if ps == 63:
            for e in (5, 22, 25): mf[e] = None
        k = 0
        if ps == chk:
            p("WAIT vm:poll"); p("\n".join(poll_check("B", 0xff, V(vT+1))))
        for e in range(32):
            if e in mf:
                if mf[e]: p(mf[e])
                for t, tag in after[k]: p(t, tag)
                k += 1
            p(f"v_exp_f32 {V(X+e)}, {V(X+e)}")
        if cfg.get("stamps") and ps % 8 == 7: stamp(p, 48 + ps // 8, cfg)
    p(PV(vS + 32, 3, 1, 1, 1))

def finish(p, cfg):
    p("L_chk:")
    T = vFT
    p(f"v_mov_b32 {V(T)}, 0\nv_mov_b32 {V(T+1)}, 0\nv_mov_b32 {V(T+2)}, 0\nv_mov_b32 {V(T+3)}, 0")
    for i in range(3): p(f"ds_write_b128 {V(vCW)}, {V(vO[2]+4*i,4)} offset:{1024*i}")
    for j in range(3):
        for i in range(5): p(f"v_pk_fma_f32 {V(T,2)}, {V(vO[j]+2*i,2)}, {V(T+2,2)}, {V(T,2)}")
    for i in range(3): p(f"ds_write_b128 {V(vCW)}, {V(vO[3]+4*i,4)} offset:{1024*(3+i)}")
    for i in range(5): p(f"v_pk_fma_f32 {V(T,2)}, {V(vO[3]+2*i,2)}, {V(T+2,2)}, {V(T,2)}")
    l = [V(o + 10) for o in vO]
    p(f"""
    v_add_f32 {V(T)}, {V(T)}, {V(T+1)}
    v_min3_f32 {V(T+1)}, {l[0]}, {l[1]}, {l[2]}
    v_min_f32 {V(T+1)}, {V(T+1)}, {l[3]}
    v_add_f32 {V(T+2)}, {l[0]}, {l[1]}
    v_add_f32 {V(T+3)}, {l[2]}, {l[3]}
    v_add_f32 {V(T+2)}, {V(T+2)}, {V(T+3)}
    v_add_f32 {V(T+2)}, {V(T+2)}, {V(T)}
    v_cmp_ngt_f32 vcc, 0x53800000, {V(T+2)}
    s_lshl_b32 {S(sU2)}, {S(sWV)}, 2
    s_mov_b64 {S(sU0,2)}, vcc
    v_cmp_nlt_f32 vcc, 0x2b800000, {V(T+1)}
    s_add_u32 {S(sU2)}, {S(sU2)}, {LDS_F}
    s_or_b64 vcc, vcc, {S(sU0,2)}
    s_cselect_b32 {S(sU0)}, 1, 0
    v_mov_b32 {V(T)}, {S(sU0)}
    v_mov_b32 {V(T+1)}, {S(sU2)}
    ds_write_b32 {V(T+1)}, {V(T)}
    v_mov_b32 {V(T+1)}, {LDS_F}
    s_waitcnt lgkmcnt(0)
    s_barrier
    ds_read_b128 {V(T+4,4)}, {V(T+1)}
    """)
    for j in (0, 1):
        for i in (2, 0, 1): p(f"ds_read_b128 {V(T+8+12*j+4*i,4)}, {V(vCR)} offset:{1024*(3*j+i)}")
    p(f"""
    v_or_b32 {V(T+4)}, {V(T+4)}, {V(T+5)}
    v_or3_b32 {V(T+4)}, {V(T+4)}, {V(T+6)}, {V(T+7)}
    v_readfirstlane_b32 {S(sU0)}, {V(T+4)}
    s_andn2_b32 {S(sU0)}, {S(sU0)}, {S(sSLOW)}
    s_cbranch_scc1 L_slow
    """)
    for j in (0, 1):
        o = vO[j]; q = T + 8 + 12 * j
        p(f"v_add_f32 {V(o+10)}, {V(o+10)}, {V(q+10)}\nv_rcp_f32 {V(o+10)}, {V(o+10)}")
        for i in range(5): p(f"v_pk_add_f32 {V(o+2*i,2)}, {V(o+2*i,2)}, {V(q+2*i,2)}")
        for i in range(5): p(f"v_pk_mul_f32 {V(o+2*i,2)}, {V(o+2*i,2)}, {V(o+10,2)} op_sel_hi:[1,0]")
        d = vO[2] + 8 * j
        for i in range(5): p(f"v_cvt_pk_bf16_f32 {V(d+i)}, {V(o+2*i)}, {V(o+2*i+1)}")
        if j: p(f"s_add_u32 {S(sOMO)}, {S(sOMO)}, 32768")
        p(f"buffer_store_dwordx4 {V(d,4)}, {V(vOMA)}, {S(sWS,4)}, {S(sOMO)} offen sc1", tag="ost")
        p(f"buffer_store_dword {V(d+4)}, {V(vOTA)}, {S(sWS,4)}, {S(sOTO)} offen offset:{128*j} sc1", tag="ost")

def slowpath(cfg):
    p = Prog(); MX = vMX; T = vFT
    p(f"L_slow:\ns_waitcnt vmcnt(0) lgkmcnt(0)\ns_barrier\ns_mov_b32 {S(sSLOW)}, 1")
    for j in range(4): p(f"v_mov_b32 {V(MX+j)}, 0xff800000")
    for o in vO:
        for r in range(o, o + 16): p(f"v_mov_b32 {V(r)}, 0")
    for ps in (0, 1):
        p(f"s_mov_b32 {S(sKO)}, {S(sKO0)}\ns_mov_b32 {S(sVO)}, {S(sVO0)}\ns_mov_b32 {S(sCNT)}, 32")
        b = Prog(); b(f"L_slow{ps}:")
        b(*tld(0, sKO, None)); b(*kld(0, 0)); b(*kld(0, 1))
        if ps: b(*vld(0, 0)); b(*vld(0, 1))
        for qp in (0, 1): b(Tm(vS + 32 * qp, 0, qp))
        for qp in (0, 1):
            for j in (0, 1): b(Mm(vS + 32 * qp, 0, qp, j))
        for t in range(4):
            x = vS + 16 * t
            if ps == 0:
                for i in range(8): b(f"v_max3_f32 {V(MX+t)}, {V(x+2*i)}, {V(x+2*i+1)}, {V(MX+t)}")
            else:
                for i in range(16): b(f"v_sub_f32 {V(x+i)}, {V(x+i)}, {V(MX+t)}")
                for i in range(16): b(f"v_exp_f32 {V(x+i)}, {V(x+i)}")
                for i in (0, 1): b(PV(vS + 32 * (t >> 1), 0, t >> 1, t & 1, i))
        b(f"s_add_u32 {S(sKO)}, {S(sKO)}, {QK_T}\ns_add_u32 {S(sVO)}, {S(sVO)}, {VT_T}\ns_sub_u32 {S(sCNT)}, {S(sCNT)}, 1\ns_cmp_lg_u32 {S(sCNT)}, 0\ns_cbranch_scc1 L_slow{ps}")
        p.add(Loop(b))
        if ps == 0:
            p(f"ds_write_b128 {V(vCW)}, {V(MX,4)}\nv_xor_b32 {V(T)}, 512, {V(vCW)}\nv_xor_b32 {V(T+1)}, 512, {V(vCR)}\ns_waitcnt lgkmcnt(0)\ns_barrier")
            p(f"ds_read_b128 {V(T+4,4)}, {V(T)}\nds_read_b128 {V(T+8,4)}, {V(vCR)}\nds_read_b128 {V(T+12,4)}, {V(T+1)}")
            for j in range(4):
                p(f"v_max_f32 {V(MX+j)}, {V(MX+j)}, {V(T+4+j)}\nv_max3_f32 {V(MX+j)}, {V(MX+j)}, {V(T+8+(j^2))}, {V(T+12+(j^2))}")
            p("s_barrier")
    p("s_nop 15\ns_branch L_chk")
    return finalize(p.items)[0]

def wfrag(j, nt):
    if j < 3: return ("a", 36 * j + 4 * nt)
    if j == 3: return ("a", aP + 4 * nt)
    return ("v", vWT + 2 * nt)
def acc(nt, e): return V(vACC + 8 * nt + 4 * e, 4)
def w_read(j, slot, nt, t):
    typ, r = wfrag(j, nt)
    return f"ds_read_b64_tr_b16 {typ}[{r+2*t}:{r+2*t+1}], {V(vTRB)} offset:{9216*slot + 8*288*t + 32*nt}"

def tail(p, cfg):
    pm = [f"v_mfma_f32_16x16x16_bf16 {acc(nt,e)}, {V(vSEL,2)}, {A(aP+16*nt+4*k+2*e,2)}, {'0' if k == 0 else acc(nt,e)}" for nt in range(9) for e in range(2) for k in range(4)]
    rd0 = [w_read(0, 0, nt, t) for nt in range(9) for t in range(2)]
    rd12 = [w_read(j, j, nt, t) for j in (1, 2) for nt in range(9) for t in range(2)] + [f"ds_read_b64_tr_b16 {V(vWT+2*nt,2)}, {V(vTRB+1)} offset:{32*nt}" for nt in range(9)]
    p("WAIT vm:w2, vm:wt, vm:pl")
    for x in rd0: p(pm.pop(0)); p(x, "r0")
    for k in range(4): p(pm.pop(0)); p(rd12.pop(0))
    for i in range(9):
        sal, vm = wo_dma(3, i, 0)
        p(pm.pop(0))
        if i == 0: p("WAIT lg:r0")
        for s_ in sal: p(s_)
        p(rd12.pop(0))
        p(pm.pop(0)); p(*vm)
    for i in range(3):
        p(pm.pop(0)); p(f"buffer_load_dwordx4 {V(vX+4*i,4)}, {V(vFA+3+i)}, {S(sX,4)}, {S(sWT+2)} offen", "xl")
    n = cfg.get("f3sig", 8)
    for k in range(n): p(pm.pop(0)); p(rd12.pop(0))
    p("WAIT vm:ost")
    p(f"buffer_store_dword {V(vT+1)}, {V(vFW)}, {S(sWS,4)}, {S(sF3W)} offen sc1", "f3")
    stamp(p, 57, cfg)
    while pm or rd12:
        if pm: p(pm.pop(0))
        if rd12: p(rd12.pop(0))
    p(F3LD, "poll")
    p("WAIT vm:w3")
    for nt in range(9):
        for t in range(2): p(w_read(3, 0, nt, t))
    p(f"s_add_u32 {S(sU0)}, {S(sWT+3)}, 16384")
    p("WAIT vm:poll"); p("\n".join(poll_check("C", 0xff, V(vT+1))))
    stamp(p, 58, cfg)
    for k in range(4):
        for e in range(2):
            p(f"buffer_load_dwordx4 {V(vOF+8*k+4*e,4)}, {V(vL16)}, {S(sWS,4)}, {S(sU0 if e else sWT+3)} offen offset:{1024*k} sc1")
        if k == 0:
            for e in range(2):
                for hh in range(2):
                    p(f"buffer_load_dword {V(vOF+32+2*e+hh)}, {V(vTRB+3)}, {S(sWS,4)}, {S(sWT+4)} offen offset:{512*hh+64*e} sc1")
    p("s_waitcnt lgkmcnt(0)")
    for jj in ((0,), (4,), (1, 2, 3)):
        for e in range(2):
            for nt in range(9):
                for j in jj:
                    typ, r = wfrag(j, nt)
                    if j == 4: p(f"v_mfma_f32_16x16x16_bf16 {acc(nt,e)}, {V(vWT+2*nt,2)}, {V(vOF+32+2*e,2)}, {acc(nt,e)}")
                    else: p(f"v_mfma_f32_16x16x32_bf16 {acc(nt,e)}, {typ}[{r}:{r+3}], {V(vOF+8*j+4*e,4)}, {acc(nt,e)}")
                if 3 in jj:
                    n_ = 9 * e + nt - 3
                    if n_ >= 0: p(f"ds_write_b128 {V(vTRB+2)}, {acc(n_%9,n_//9)} offset:{16*PITCH*(n_//9) + 64*(n_%9)}")
    for n_ in range(15, 18): p(f"ds_write_b128 {V(vTRB+2)}, {acc(n_%9,n_//9)} offset:{16*PITCH*(n_//9) + 64*(n_%9)}")
    stamp(p, 59, cfg)
    T = vACC; U = 16
    for ii in range(3):
        for k in range(4):
            p(f"v_lshlrev_b32 {V(U+8*ii+2*k)}, 16, {V(vX+4*ii+k)}\nv_and_b32 {V(U+8*ii+2*k+1)}, 0xffff0000, {V(vX+4*ii+k)}")
    for i in range(3): p(f"v_add_u32 {V(vC+i)}, {2*WREG}, {V(vFA+i)}")
    p("s_waitcnt lgkmcnt(0)\ns_barrier")
    for i in range(3):
        if i == 2: p(f"s_cmp_lg_u32 {S(sWV)}, 0\ns_cbranch_scc1 L_fin")
        R = T + 32 * (i & 1)
        for src in range(4):
            for u in range(2):
                p(f"ds_read_b128 {V(R+8*src+4*u,4)}, {V(vFA+i) if src < 2 else V(vC+i)} offset:{WREG*(src&1) + 16*u}")
        if i == 0: continue
        for ii in ((0, 1) if i == 1 else (2,)):
            R = T + 32 * (ii & 1); X = vX + 4 * ii; u_ = U + 8 * ii
            for src in range(4):
                for k in range(4): p(f"v_pk_add_f32 {V(u_+2*k,2)}, {V(u_+2*k,2)}, {V(R+8*src+2*k,2)}")
            if cfg.get("perturb") and ii == 2: p(f"v_add_f32 {V(u_)}, {cfg['perturb']}, {V(u_)}")
            for k in range(4): p(f"v_cvt_pk_bf16_f32 {V(X+k)}, {V(u_+2*k)}, {V(u_+2*k+1)}")
            p(f"buffer_store_dwordx4 {V(X,4)}, {V(vFA+3+ii)}, {S(sOUT,4)}, {S(sWT+2)} offen")
    p("L_fin:")

def outofline(cfg):
    return spin("A", F1LD, 15, 64) + spin("B", F2LD, 0xff, V(vT+1)) + spin("C", F3LD, 0xff, V(vT+1)) + slowpath(cfg)
```

```python
from asmfw import *
from sched import *

def V(a, n=1): return f"v{a}" if n == 1 else f"v[{a}:{a+n-1}]"
def A(a, n=1): return f"a{a}" if n == 1 else f"a[{a}:{a+n-1}]"
def S(a, n=1): return f"s{a}" if n == 1 else f"s[{a}:{a+n-1}]"

WS_QK = 0
QK_SEC = 2359296; QK_PAIR = 147456; QK_T = 2304
WS_VT = 2 * QK_SEC
VT_HEAD = 81920; VT_T = 1280; VT_G = 320
WS_OM = WS_VT + 32 * VT_HEAD
WS_OT = WS_OM + 16 * 8 * 16 * 1024
WS_FL = WS_OT + 16 * 16 * 1024
WS_P = WS_FL + 256 * 1024
WS_END = WS_P + 16 * 4 * 36 * 16 * 1024
WS_TS = WS_END
assert WS_OM % 1024 == 0 and WS_P % 1024 == 0

import os
WS_BASE = int(os.environ.get("WS_BASE", "0"))
WS_SIZE = 0x10000000 - WS_BASE
sX, sWQ, sWG, sWU, sWD, sWS, sWH, sOUT, sWO, sDBG, sWQB, sWSB = 4, 8, 12, 16, 20, 24, 28, 32, 36, 40, 44, 48
sM, sS, sWV, sLW = 52, 53, 54, 55
sT0, sT1, sT2, sT3 = 56, 57, 58, 59
sSO = 60

SLOT = 36864
LDS_X = 4 * SLOT
LDS_BYTES = 163840

def srd(p, dst, src, nbytes):
    p(f"s_mov_b32 {S(dst)}, {S(src)}\ns_and_b32 {S(dst+1)}, {S(src+1)}, 0xffff\ns_mov_b32 {S(dst+2)}, {nbytes}\ns_mov_b32 {S(dst+3)}, 0x20000")

def prologue(p, exit_label, cfg={}, code=None):
    ns = cfg.get("ns", 4); lg = ns.bit_length() - 1
    if cfg.get("stamps"): p("s_memrealtime s[94:95]\ns_memtime s[92:93]")
    p(f"""
    s_cmp_ge_u32 s2, 256
    s_cbranch_scc1 {exit_label}
    s_load_dwordx8 s[64:71], s[0:1], 0
    s_load_dwordx8 s[72:79], s[0:1], 32
    s_load_dwordx4 s[80:83], s[0:1], 64
    s_lshr_b32 {S(sT1)}, s2, 3
    """)
    if code:
        p(f"""
        s_getpc_b64 s[4:5]
        {code[0]}:
        s_mov_b32 s6, {code[1]}-{code[0]}
        s_mov_b32 s7, 0x20000
        s_lshl_b32 {S(sT0)}, {S(sT1)}, 7
        v_lshl_add_u32 v1, v0, 12, {S(sT0)}
        """)
        p("buffer_load_dword v254, v1, s[4:7], 0 offen", tag="touch")
    p(f"""
    v_lshrrev_b32 v1, 6, v0
    v_and_b32 v0, 63, v0
    s_and_b32 {S(sT0)}, s2, 7
    v_readfirstlane_b32 {S(sWV)}, v1
    s_and_b32 {S(sS)}, {S(sT0)}, {16//ns-1}
    s_lshl_b32 {S(sS)}, {S(sS)}, {lg}
    s_and_b32 {S(sT2)}, {S(sT1)}, {ns-1}
    s_add_u32 {S(sS)}, {S(sS)}, {S(sT2)}
    s_lshr_b32 {S(sM)}, {S(sT0)}, {4-lg}
    s_lshl_b32 {S(sM)}, {S(sM)}, {5-lg}
    s_lshr_b32 {S(sT1)}, {S(sT1)}, {lg}
    s_add_u32 {S(sM)}, {S(sM)}, {S(sT1)}
    s_lshl_b32 {S(sLW)}, {S(sWV)}, 10
    """)
    if cfg.get("badmap"): p(f"s_lshr_b32 {S(sS)}, s2, 4\ns_and_b32 {S(sM)}, s2, 15")
    p("s_waitcnt lgkmcnt(0)")
    srd(p, sX, 64, 2359296)
    srd(p, sWQ, 66, 1990656)
    srd(p, sWO, 68, 663552)
    srd(p, sWG, 72, 5308416)
    srd(p, sWU, 74, 5308416)
    srd(p, sWD, 76, 5308416)
    srd(p, sOUT, 78, 2359296)
    srd(p, sDBG, 80, 256)
    if WS_BASE: p(f"s_add_u32 s82, s82, {WS_BASE}\ns_addc_u32 s83, s83, 0")
    srd(p, sWS, 82, WS_SIZE)

def kdesc(name, nfv=512, acc=256):
    return f""".amdhsa_kernel {name}
  .amdhsa_next_free_vgpr {nfv}
  .amdhsa_next_free_sgpr 102
  .amdhsa_accum_offset {acc}
  .amdhsa_group_segment_fixed_size 0
  .amdhsa_kernarg_size 80
  .amdhsa_user_sgpr_count 2
  .amdhsa_user_sgpr_kernarg_segment_ptr 1
  .amdhsa_system_sgpr_workgroup_id_x 1
.end_amdhsa_kernel
"""

def stamp(p, idx, cfg):
    if cfg.get("stamps"):
        p(f"s_memtime s[96:97]\ns_waitcnt lgkmcnt(0)\nv_writelane_b32 v255, s96, {idx}")
```

```python
from common import *
import math, struct

def f32bits(x): return struct.unpack("<I", struct.pack("<f", x))[0]

vTR0, vTR1, vTRH, vDG, vDQ, vDH, vDD, vXW, vXR, vER0, vER1 = 1, 2, 3, 4, 5, 6, 7, 8, 9, 10, 11
vST = 12
vAF = 16
vXV = 40
vACC = 72
vH = 168
vHH = 232
vGT = 248
NGT = 4
vC0 = 252
vTG = 253
vSINK = 254
vTD = [10, 11, 12, 13, 3, 6]
vPS = 4
aHP = 0
aPK = 112
sQA, sQB, sF0, sFH, sD0, sDH = 61, 62, 63, 64, 65, 66
sSTA, sSTB = 68, 70
sPB1 = 72
sSCA, sXF2 = 76, 77
sC0, sC1, sISV, sXFIX, sPB = 78, 79, 80, 81, 82
sONE, sLO, sHI = 67, 83, 3
sXO = 84
vRAW, vLT = 36, 180
LDS_R = 3 * SLOT

def xfrag(ks, tt):
    i = ks * 4 + tt
    return A(4 * i, 4) if i < 64 else V(vXV + 4 * (i - 64), 4)
def acc(st, a, tt): return vACC + 32 * st + 16 * a + 4 * tt

BLOCKS = [("G", 0), ("U", 0), ("A", 0), ("G", 1), ("U", 1), ("H", 0), ("G", 2), ("U", 2), ("G", 3), ("U", 3), ("B", 0)]
STAGES = [(k, b, kh) for k, b in BLOCKS for kh in (0, 1)] + [("D", j, 0) for j in range(9)]
SLOTOF = [si % 4 for si in range(23)] + [0, 1, 3, 2, 0, 1, 3, 2]
assert len(SLOTOF) == len(STAGES)

def dma_list(si):
    kind, b, kh = STAGES[si]; base = SLOTOF[si] * SLOT; L = []
    for j in range(9):
        if kind == "A": L.append((sQA, (288 * kh + 32 * j) * 3456, base + 4096 * j, vDQ, sWQ, False))
        elif kind == "B": L.append((sQB, (288 * kh + 32 * j) * 3456, base + 4096 * j, vDQ, sWQB, False))
        elif kind == "G": L.append((sF0, (288 * kh + 32 * j) * 9216 + 128 * b, base + 4096 * j, vDG, sWG, False))
        elif kind == "U": L.append((sF0, (288 * kh + 32 * j) * 9216 + 128 * b, base + 4096 * j, vDG, sWU, False))
        elif kind == "H": L.append((sFH, (288 * kh + 32 * j) * 9216, base + 2048 * j, vDH, sWH, True))
        elif j < 8: L.append((sD0, 32 * j * 1152 + 128 * b, base + 4096 * j, vDD, sWD, False))
        else: L.append((sDH, 128 * b, base + 4096 * j, vDD, sWD, False))
    return L

def xloads(rg, cfg):
    return [Ins(f"buffer_load_dwordx4 {V(vRAW+36*rg+4*j,4)}, v18, {S(sX,4)}, {S(sXO+rg)} offen offset:{128*j} {cfg.get('xpol','')}", f"x{rg}_{j}") for j in range(9)]

def dma_ins(si, cfg):
    L = []
    for (sb, c, m0c, vo, sr, isH) in dma_list(si):
        L.append([Ins(f"s_add_u32 m0, {S(sLW)}, {m0c}"), Ins(f"s_add_u32 {S(sSO)}, {S(sb)}, {c}"),
                  Ins(f"buffer_load_dwordx4 {V(vo)}, {S(sr,4)}, {S(sSO)} offen {cfg.get('wpol','')} lds", f"st{si}")])
    return L

def touch_rows(p, dst, stride, cfg):
    nm = 32 // cfg.get("ns", 4); R = 288 // nm
    assert R <= 64
    p(f"""
    s_and_b32 {S(sT0)}, {S(sM)}, {nm-1}
    s_mul_i32 {S(sT0)}, {S(sT0)}, {R}
    s_and_b32 {S(sT1)}, {S(sWV)}, 1
    s_mul_i32 {S(sT1)}, {S(sT1)}, 288
    s_add_u32 {S(sT0)}, {S(sT0)}, {S(sT1)}
    v_add_u32 {V(dst)}, {S(sT0)}, v0
    v_mul_u32_u24 {V(dst)}, {stride}, {V(dst)}
    v_cmp_gt_u32 vcc, {R}, v0
    v_mov_b32 v35, 0x7fff0000
    v_cndmask_b32 {V(dst)}, v35, {V(dst)}, vcc
    """)

def setup(p, cfg):
    tp = cfg.get("tpol", "")
    p(f"""
    v_lshrrev_b32 v16, 3, v0
    v_and_b32 v17, 7, v0
    v_mul_u32_u24 v18, 1152, v16
    v_lshl_add_u32 v18, v17, 4, v18
    s_lshl_b32 {S(sT0)}, {S(sM)}, 3
    s_and_b32 {S(sT1)}, {S(sWV)}, 2
    s_add_u32 {S(sT0)}, {S(sT0)}, {S(sT1)}
    s_add_u32 {S(sT0)}, {S(sT0)}, {S(sWV)}
    s_and_b32 {S(sT1)}, {S(sS)}, {2 if cfg.get("rot", 1) else 0}
    s_add_u32 {S(sT0)}, {S(sT0)}, {S(sT1)}
    s_lshl_b32 {S(sT0)}, {S(sT0)}, 1
    s_and_b32 {S(sT1)}, {S(sS)}, {1 if cfg.get("rot", 1) else 0}
    s_add_u32 {S(sT0)}, {S(sT0)}, {S(sT1)}
    s_mul_i32 {S(sXO)}, {S(sT0)}, 9216
    """)
    p.extend(xloads(0, cfg))
    for rg in range(1, 4): p(f"s_xor_b32 {S(sT1)}, {S(sT0)}, {(rg & 1) + 4 * (rg >> 1)}\ns_mul_i32 {S(sXO+rg)}, {S(sT1)}, 9216")
    p(f"""
    s_lshl_b32 {S(sQA)}, {S(sS)}, 7
    s_cmp_lt_u32 {S(sS)}, 9
    s_cselect_b32 {S(sISV)}, 1, 0
    s_cselect_b32 {S(sT0)}, 18, 7
    s_add_u32 {S(sT0)}, {S(sT0)}, {S(sS)}
    s_lshl_b32 {S(sQB)}, {S(sT0)}, 7
    """)
    p(f"""
    s_cmp_lt_u32 {S(sWV)}, 2
    s_cselect_b32 {S(sWH)}, {S(sWG)}, {S(sWU)}
    s_cselect_b32 {S(sWH+1)}, {S(sWG+1)}, {S(sWU+1)}
    s_mov_b32 {S(sWH+2)}, 5308416
    s_mov_b32 {S(sWH+3)}, 0x20000
    ; f offsets
    s_mul_i32 {S(sT0)}, {S(sS)}, 288
    s_and_b32 {S(sT1)}, {S(sS)}, 1
    s_lshl_b32 {S(sT3)}, {S(sT1)}, 5
    s_add_u32 {S(sF0)}, {S(sT0)}, {S(sT3)}
    s_xor_b32 {S(sT1)}, {S(sT1)}, 1
    s_lshl_b32 {S(sT1)}, {S(sT1)}, 8
    s_add_u32 {S(sFH)}, {S(sT0)}, {S(sT1)}
    s_mul_i32 {S(sD0)}, {S(sF0)}, 1152
    s_mul_i32 {S(sDH)}, {S(sFH)}, 1152
    s_lshl_b32 {S(sF0)}, {S(sF0)}, 1
    s_lshl_b32 {S(sFH)}, {S(sFH)}, 1
    """)
    if cfg.get("touch", 1):
        touch_rows(p, vTG, 9216, cfg)
        p.extend(touch_gu(0, cfg))
    p(f"""
    s_and_b32 {S(sT2)}, {S(sWV)}, 1
    s_lshl_b32 {S(sT2)}, {S(sT2)}, 2
    v_and_b32 v19, 2, v16
    v_or_b32 v19, {S(sT2)}, v19
    v_xor_b32 v19, v19, v17
    v_lshlrev_b32 v19, 4, v19
    s_lshl_b32 {S(sT3)}, {S(sWV)}, 3
    v_add_u32 v20, {S(sT3)}, v16
    v_mul_u32_u24 v21, 3456, v20
    v_add_u32 {V(vDQ)}, v21, v19
    """)

def setup2(p, cfg):
    p(f"""
    v_mul_u32_u24 v21, 9216, v20
    v_add_u32 {V(vDG)}, v21, v19
    v_and_b32 v21, 6, v16
    v_xor_b32 v21, v21, v17
    v_mul_u32_u24 v22, 1152, v20
    v_lshl_add_u32 {V(vDD)}, v21, 4, v22
    v_lshrrev_b32 v21, 2, v0
    v_lshrrev_b32 v22, 5, v0
    v_lshlrev_b32 v22, 1, v22
    v_and_b32 v23, 3, v0
    v_xor_b32 v22, v22, v23
    s_and_b32 {S(sT2)}, {S(sWV)}, 1
    s_lshl_b32 {S(sT3)}, {S(sT2)}, 4
    v_add_u32 v21, {S(sT3)}, v21
    v_mul_u32_u24 v21, 9216, v21
    v_lshl_add_u32 {V(vDH)}, v22, 4, v21
    s_cmp_lt_u32 {S(sS)}, 11
    s_mov_b32 {S(sWQB)}, {S(sWQ)}
    s_mov_b32 {S(sWQB+1)}, {S(sWQ+1)}
    s_cselect_b32 {S(sWQB+2)}, 1990656, 0
    s_mov_b32 {S(sWQB+3)}, 0x20000
    s_mov_b32 {S(sWSB)}, {S(sWS)}
    s_mov_b32 {S(sWSB+1)}, {S(sWS+1)}
    s_cselect_b32 {S(sWSB+2)}, {WS_SIZE}, 0
    s_mov_b32 {S(sWSB+3)}, 0x20000
    ; lane decomposition for MFMA layouts: v21 = c (l&15), v22 = g (l>>4), v23 = r ((l>>2)&3), v24 = l&3
    v_and_b32 v21, 15, v0
    v_lshrrev_b32 v22, 4, v0
    v_bfe_u32 v23, v0, 2, 2
    v_and_b32 v24, 3, v0
    v_lshl_add_u32 v25, v22, 3, v23
    v_lshrrev_b32 v26, 1, v23
    v_and_b32 v27, 1, v22
    v_lshl_or_b32 v26, v27, 1, v26
    s_lshl_b32 {S(sT3)}, {S(sT2)}, 1
    v_xor_b32 v26, {S(sT3)}, v26
    v_lshlrev_b32 v28, 7, v25
    v_lshl_add_u32 v28, v24, 3, v28
    v_lshl_add_u32 {V(vTR0)}, v26, 5, v28
    v_xor_b32 {V(vTR1)}, 32, {V(vTR0)}
    v_xor_b32 v27, {S(sT2)}, v27
    v_lshlrev_b32 v28, 6, v25
    v_lshl_add_u32 v28, v24, 3, v28
    v_lshl_add_u32 {V(vTRH)}, v27, 5, v28
    v_add_u32 {V(vTRH)}, {SLOTOF[STAGES.index(('H', 0, 0))]*SLOT}, {V(vTRH)}
    s_lshr_b32 {S(sT0)}, {S(sWV)}, 1
    s_lshl_b32 {S(sT0)}, {S(sT0)}, 12
    s_add_u32 {S(sT1)}, {S(sT0)}, {LDS_R}
    v_lshl_add_u32 {V(vXR)}, v0, 4, {S(sT1)}
    s_lshl_b32 {S(sT1)}, {S(sT2)}, 3
    v_add_u32 {V(vXW)}, {S(sT1)}, {V(vXR)}
    s_mul_i32 {S(sXFIX)}, {S(sT2)}, 4088
    s_add_u32 {S(sXFIX)}, {S(sXFIX)}, {S(sT0)}
    s_xor_b32 {S(sXF2)}, {S(sT2)}, 1
    s_lshl_b32 {S(sXF2)}, {S(sXF2)}, 12
    s_add_u32 {S(sXF2)}, {S(sXF2)}, {S(sT0)}
    s_lshr_b32 {S(sT0)}, {S(sWV)}, 1
    s_mul_i32 {S(sT0)}, {S(sT0)}, {SLOT}
    s_add_u32 {S(sT0)}, {S(sT0)}, {2*SLOT}
    v_xor_b32 v26, v0, v22
    v_lshl_add_u32 {V(vER0)}, v26, 4, {S(sT0)}
    v_xor_b32 {V(vER1)}, 64, {V(vER0)}
    s_mul_i32 {S(sT0)}, {S(sWV)}, 18432
    s_add_u32 {S(sT0)}, {S(sT0)}, {2*SLOT}
    v_xor_b32 v26, v16, v17
    v_lshlrev_b32 v26, 4, v26
    v_lshl_add_u32 v26, v17, 8, v26
    s_and_b32 {S(sT1)}, {S(sS)}, {1 if cfg.get("rot", 1) else 0}
    s_lshl_b32 {S(sT1)}, {S(sT1)}, 7
    s_add_u32 {S(sT0)}, {S(sT0)}, {S(sT1)}
    v_add_u32 v16, {S(sT0)}, v26
    v_xor_b32 v17, 128, v16
    s_mov_b32 {S(sONE)}, 0x3f803f80
    s_mov_b32 {S(sHI)}, 0xffff0000
    """)

def setup3(p, cfg):
    p(f"s_and_b32 {S(sT2)}, {S(sWV)}, 1")
    p(f"""
    s_cmp_lt_u32 {S(sS)}, 9
    s_cselect_b32 {S(sT0)}, 0, 9
    s_cselect_b32 {S(sT1)}, {WS_QK}, {WS_QK+QK_SEC}
    s_cselect_b32 {S(sSCA)}, {f32bits(18**-0.5*math.log2(math.e))}, 1.0
    s_sub_u32 {S(sT0)}, {S(sS)}, {S(sT0)}
    """)
    def qk_addr(dst, sblk, ssec):
        p(f"s_lshl_b32 {S(sT3)}, {S(sblk)}, 1\ns_add_u32 {S(sT3)}, {S(sT3)}, {S(sT2)}\ns_lshl_b32 {S(sT3)}, {S(sT3)}, 3")
        for a in (0, 1):
            p(f"""
            v_add_u32 v26, {S(sT3)}, v22
            v_add_u32 v26, {4*a}, v26
            v_mul_u32_u24 v27, 57, v26
            v_lshrrev_b32 v27, 9, v27
            v_mul_u32_u24 v28, {QK_PAIR - 9*256}, v27
            v_lshl_add_u32 v28, v26, 8, v28
            v_lshl_add_u32 v28, v21, 4, v28
            v_add_u32 {V(dst+a)}, {S(ssec)}, v28
            """)
    qk_addr(vST, sT0, sT1)
    p(f"""
    s_lshl_b32 {S(sT0)}, {S(sM)}, 2
    s_and_b32 {S(sT1)}, {S(sWV)}, 2
    s_add_u32 {S(sPB)}, {S(sT0)}, {S(sT1)}
    s_bfe_u32 {S(sT0)}, {S(sS)}, {0x10001 if cfg.get("rot", 1) else 0x1001f}
    s_add_u32 {S(sPB)}, {S(sPB)}, {S(sT0)}
    s_xor_b32 {S(sPB1)}, {S(sPB)}, 1
    s_mul_i32 {S(sSTA)}, {S(sPB)}, {QK_T}
    s_mul_i32 {S(sSTA+1)}, {S(sPB1)}, {QK_T}
    s_cmp_eq_u32 {S(sISV)}, 1
    s_cbranch_scc1 L_adrV
    s_sub_u32 {S(sT0)}, {S(sS)}, 2
    s_min_u32 {S(sT0)}, {S(sT0)}, 8
    s_mov_b32 {S(sT1)}, {WS_QK+QK_SEC}
    """)
    qk_addr(vST + 2, sT0, sT1)
    p(f"""
    s_mov_b32 {S(sSTB)}, {S(sSTA)}
    s_mov_b32 {S(sSTB+1)}, {S(sSTA+1)}
    s_branch L_adrD
    L_adrV:
    s_lshl_b32 {S(sT3)}, {S(sS)}, 1
    s_add_u32 {S(sT3)}, {S(sT3)}, {S(sT2)}
    s_lshl_b32 {S(sT3)}, {S(sT3)}, 5
    """)
    for a in (0, 1):
        p(f"""
        v_add_u32 v26, {S(sT3)}, v21
        v_add_u32 v26, {16*a}, v26
        v_mul_u32_u24 v27, 3641, v26
        v_lshrrev_b32 v27, 16, v27
        v_mul_u32_u24 v28, {VT_HEAD - 18*16}, v27
        v_lshl_add_u32 v28, v26, 4, v28
        v_mul_u32_u24 v27, {VT_G}, v22
        v_add_u32 v28, v27, v28
        v_add_u32 {V(vST+2+a)}, {WS_VT}, v28
        """)
    p(f"""
    s_mul_i32 {S(sSTB)}, {S(sPB)}, {VT_T}
    s_mul_i32 {S(sSTB+1)}, {S(sPB1)}, {VT_T}
    L_adrD:
    s_nop 1
    v_bfe_u32 v26, v0, 2, 1
    v_mul_u32_u24 v26, {VT_HEAD}, v26
    v_mul_u32_u24 v27, {VT_G}, v24
    v_add_u32 v26, v26, v27
    v_cmp_gt_u32 vcc, 8, v0
    v_mov_b32 v27, 0x7fff0000
    v_cndmask_b32 v26, v27, v26, vcc
    s_lshl_b32 {S(sT0)}, {S(sM)}, 2
    s_add_u32 {S(sT0)}, {S(sT0)}, {S(sWV)}
    s_mul_i32 {S(sPB)}, {S(sPB)}, {36*16*1024}
    s_mul_i32 {S(sPB1)}, {S(sPB1)}, {36*16*1024}
    s_mul_i32 {S(sT0)}, {S(sT0)}, {VT_T}
    s_mul_i32 {S(sT1)}, {S(sS)}, {2*VT_HEAD}
    s_add_u32 {S(sT0)}, {S(sT0)}, {S(sT1)}
    s_add_u32 {S(sT0)}, {S(sT0)}, {WS_VT + 18*16}
    v_mov_b32 v20, 0x3f803f80
    v_mov_b32 v21, 0x3f803f80
    v_mov_b32 v22, 0x3f803f80
    v_mov_b32 v23, 0x3f803f80
    """)
    p(f"buffer_store_dwordx4 v[20:23], v26, {S(sWS,4)}, {S(sT0)} offen {cfg['sc']}", tag="qkvst")
    p(f"""
    s_lshl_b32 {S(sT1)}, {S(sS)}, 10
    s_lshl_b32 {S(sT0)}, {S(sT2)}, 15
    s_add_u32 {S(sT1)}, {S(sT1)}, {S(sT0)}
    s_add_u32 {S(sT1)}, {S(sT1)}, {WS_P}
    s_add_u32 {S(sPB)}, {S(sPB)}, {S(sT1)}
    s_add_u32 {S(sPB1)}, {S(sPB1)}, {S(sT1)}
    s_mov_b32 {S(sC0)}, {f32bits(-2*math.sqrt(2/math.pi)*math.log2(math.e))}
    s_mov_b32 {S(sC1)}, {f32bits(-2*math.sqrt(2/math.pi)*0.044715*math.log2(math.e))}
    """)


def red8(r):
    return [f"v_add_f32_dpp {V(r)}, {V(r)}, {V(r)} quad_perm:[1,0,3,2] row_mask:0xf bank_mask:0xf",
            f"v_add_f32_dpp {V(r)}, {V(r)}, {V(r)} quad_perm:[2,3,0,1] row_mask:0xf bank_mask:0xf",
            f"v_add_f32_dpp {V(r)}, {V(r)}, {V(r)} row_half_mirror row_mask:0xf bank_mask:0xf"]
def rbf(dst, src):
    return [f"v_cvt_pk_bf16_f32 {V(dst)}, {V(src)}, {V(src)}", f"v_lshlrev_b32 {V(dst)}, 16, {V(dst)}"]
def I(L, tag=None): return [x if isinstance(x, Ins) else Ins(x, tag) for x in L]

def ln_parts(rg):
    raw = vRAW + 36 * rg; T = vLT; a, q, c = 20, 22, 24
    St = []
    for i in range(36):
        if i == 0: St += [f"v_dot2_f32_bf16 {V(a)}, {V(raw)}, {S(sONE)}, 0", f"v_dot2_f32_bf16 {V(q)}, {V(raw)}, {V(raw)}, 0", f"v_mov_b32 {V(a+1)}, 0", f"v_mov_b32 {V(q+1)}, 0"]
        else: St += [f"v_dot2c_f32_bf16 {V(a+1)}, {S(sONE)}, {V(raw+i)}", f"v_dot2c_f32_bf16 {V(q+1)}, {V(raw+i)}, {V(raw+i)}"]
    r1, r2 = red8(a), red8(q)
    C = [f"v_add_f32 {V(a)}, {V(a)}, {V(a+1)}", f"v_add_f32 {V(q)}, {V(q)}, {V(q+1)}"] + [x for pr in zip(r1, r2) for x in pr] + \
        [f"v_mul_f32 {V(a)}, {f32bits(1/576)}, {V(a)}", f"v_mul_f32 {V(q)}, {f32bits(1/576)}, {V(q)}", f"v_fma_f32 {V(q)}, -{V(a)}, {V(a)}, {V(q)}", f"v_max_f32 {V(q)}, 0, {V(q)}"] + \
        rbf(q, q) + [f"v_add_f32 {V(q)}, {f32bits(1e-5)}, {V(q)}"] + rbf(q, q) + [f"v_sqrt_f32 {V(q)}, {V(q)}"] + rbf(a, a) + rbf(q, q) + \
        [f"v_rcp_f32 {V(c)}, {V(q)}", f"v_mul_f32 {V(c+1)}, -{V(a)}, {V(c)}"]
    U = []
    for i in range(36): U += [f"v_lshlrev_b32 {V(T+2*i)}, 16, {V(raw+i)}", f"v_and_b32 {V(T+2*i+1)}, {S(sHI)}, {V(raw+i)}"]
    F = []
    for j in range(9):
        F += I([f"v_pk_fma_f32 {V(T+2*i,2)}, {V(T+2*i,2)}, {V(c,2)}, {V(c,2)} op_sel:[0,0,1] op_sel_hi:[1,0,1]" for i in range(4 * j, 4 * j + 4)])
        F += I([f"v_cvt_pk_bf16_f32 {V(raw+i)}, {V(T+2*i)}, {V(T+2*i+1)}" for i in range(4 * j, 4 * j + 4)])
        F += I([f"ds_write_b128 {V(16+(rg&1))}, {V(raw+4*j,4)} offset:{2048*j}"], "ew")
    return dict(S=I(St), C=I(C), U=I(U), F=F)

def weave(chain, fill, k=2, lead=0):
    out = list(fill[:lead]); fill = list(fill[lead:])
    for c in chain:
        out.append(c); out += fill[:k]; fill = fill[k:]
    return out + fill
def sprinkle(base, groups, start=0):
    out = []; n = len(groups); L = len(base) - start; gi = 0
    for i, x in enumerate(base):
        while gi < n and i >= start + gi * L // n: out += groups[gi]; gi += 1
        out.append(x)
    for g in groups[gi:]: out += g
    return out

def eread(ks, fh2, rho):
    return f"ds_read_b128 {xfrag(ks, 2*rho+fh2)}, {V(vER0 + (ks&1))} offset:{18432*fh2 + 1024*ks}"

def touch_gu(b, cfg):
    if b < 0: return [Ins(f"buffer_load_dword {V(vSINK)}, {V(vTG)}, {S(sWH,4)}, {S(sFH)} offen {cfg.get('tpol','')}", "touch")]
    return [Ins(f"buffer_load_dword {V(vSINK)}, {V(vTG)}, {S(sWH,4)}, {S(sF0)} offen offset:{128*b} {cfg.get('tpol','')}", "touch")]

def layernorm(p, cfg):
    tch = cfg.get("touch", 1)
    for rg in range(4):
        L = ln_parts(rg)
        nxt = [[x] for x in xloads(rg + 1, cfg)] if rg < 3 else dma_ins(0, cfg)
        St = L["S"]; body = []
        for j in range(0, 9, 3):
            lo = 0 if j == 0 else 8 * j + 2; hi = 8 * (j + 3) + 2
            body += [Ins(f"WAIT vm:x{rg}_{j+2}")] + [x for g in nxt[j:j + 3] for x in g] + St[lo:hi]
        cu = weave(L["C"], L["U"], 1, lead=3); grp = []
        if rg == 1 and tch:
            grp = [I([f"v_lshrrev_b32 v26, 3, {V(vTG)}", "v_lshl_add_u32 v26, v26, 1, v26", f"s_cmp_lt_u32 {S(sWV)}, 2", f"s_cselect_b32 {S(sT0)}, {S(sQA)}, {S(sQB)}"]) +
                   I([f"buffer_load_dword {V(vSINK)}, v26, {S(sWQ,4)}, {S(sT0)} offen {cfg.get('tpol','')}"], "touch")]
        if rg == 2:
            er = [Ins(eread(ks, fh2, 0), "er0") for ks in range(18) for fh2 in (0, 1)]
            body = sprinkle(body, [er[6 * i:6 * i + 6] for i in range(3)])
            cu = sprinkle(cu[:70], [er[6 * i:6 * i + 6] for i in range(3, 6)]) + cu[70:]
            if tch: grp = [touch_gu(1, cfg)]
        if grp: cu = cu + [x for g in grp for x in g]
        p.extend(body)
        if cfg.get("stamps") == 2: stamp(p, 48 + 3 * rg, cfg)
        p.extend(cu)
        if cfg.get("stamps") == 2: stamp(p, 49 + 3 * rg, cfg)
        if rg == 2: p("s_waitcnt lgkmcnt(0)\ns_barrier")
        F = L["F"]
        if rg == 3:
            d = dma_ins(1, cfg); F2 = []
            for j in range(9): F2 += d[j][:2] + F[9 * j:9 * j + 9] + d[j][2:]
            F = F2
        p.extend(F)
        if rg == 1: p("s_waitcnt lgkmcnt(0)\ns_barrier")
        if cfg.get("stamps") == 2: stamp(p, 50 + 3 * rg, cfg)
    p("WAIT vm:st0, lg:*\ns_barrier")

DKS = [("o", 0), ("o", 1), ("o", 2), ("h", 0), ("p", 0), ("p", 1), ("p", 2), ("o", 3), ("p", 3)]
def hfrag(ks, tt):
    k, b = DKS[ks]
    return V(vH + 16 * b + 4 * tt, 4) if k == "o" else V(vHH + 4 * tt, 4) if k == "h" else A(aHP + 16 * b + 4 * tt, 4)

def trread(si, a, ks, t, dst):
    kind, b, kh = STAGES[si]
    k = ks - 9 * kh
    if kind == "H": return f"ds_read_b64_tr_b16 {dst}, {V(vTRH)} offset:{18432*a + 2048*k + 256*t}"
    if kind == "D":
        kk, bb = DKS[ks]
        return f"ds_read_b64_tr_b16 {dst}, {V(vTD[2*'oph'.index(kk) + a])} offset:{(32768 if kk == 'h' else 8192*bb) + 2048*t}"
    return f"ds_read_b64_tr_b16 {dst}, {V(vTR0+a)} offset:{4096*k + 512*t}"

def mainpart(cfg, hook=None):
    sc = Sched(); pre = Prog()
    MF = "v_mfma_f32_16x16x32_bf16"
    setof = {}; nset = 0
    groups = []
    for si, (kind, b, kh) in enumerate(STAGES):
        if kh == 0: setof[(kind, b)] = nset % 3 if kind != "D" else (2, 0)[b & 1]; nset += 1
        st = setof[(kind, b)]
        order = [(a, tri) for a in (0, 1) for tri in range(3)]
        if (kind, b) == ("D", 0): order = [(0, 0), (0, 1), (1, 0), (1, 1), (0, 2), (1, 2)]
        for a, tri in order:
            kss = [9 * kh + 3 * tri + k for k in range(3)]
            bop = hfrag if kind == "D" else xfrag
            groups.append(dict(si=si, frags=[(a, ks) for ks in kss],
                               mf=[(k, bop(kss[k], tt), acc(st, a, tt), kss[k] == 0, (kind, b, a, tt)) for tt in range(4) for k in range(3)]))
    firstw = {}; lastw = {}; stage_start = {}
    for gi, G in enumerate(groups):
        G["buf"] = [vAF + 12 * (gi % 2) + 4 * i for i in range(3)]
        G["start"] = len(sc.mf); stage_start.setdefault(G["si"], G["start"]); G["fuse"] = {}
        for (fi, Bop, ac, first, key) in G["mf"]:
            g = sc.mfma(f"{MF} {V(ac,4)}, {V(G['buf'][fi],4)}, {Bop}, {'0' if first else V(ac,4)}")
            G["fuse"].setdefault(fi, g); firstw.setdefault(key, g); lastw[key] = g
        G["end"] = len(sc.mf)
    NG = len(sc.mf); nst = len(STAGES); sidx = {x: i for i, x in enumerate(STAGES)}
    bar = {}
    for si in range(nst - 1):
        g = stage_start[si] + 61
        w = sc.task(f"WAIT vm:st{si+1}, lg:*", "s", earliest=g, deadline=g, prio=0)
        bar[si] = sc.task("s_barrier", "s", deps=[w], earliest=g, deadline=g, prio=0, cost=8)
        sc.gapbudget[g] = 4
    if cfg.get("stamps"):
        for si in range(nst - 1):
            g = bar[si].earliest
            if si: sc.task(f"v_writelane_b32 v255, s96, {16+si-1}", "v", deps=[bar[si]], earliest=g + 1, deadline=g + 1, prio=0)
            sc.task("s_memtime s[96:97]", "s", deps=[bar[si]], earliest=g + 2, deadline=g + 2, prio=0)
    qst = []
    LAT = 4
    order = [k for k in setof]
    def next_write(kind, b, a, tt):
        i = order.index((kind, b))
        nx = [k for k in order[i + 1:] if setof[k] == setof[(kind, b)]]
        return firstw[nx[0] + (a, tt)] if nx else None
    for bi, kind in enumerate("AB"):
        st = setof[(kind, 0)]
        for a in (0, 1):
            for pr in (0, 1):
                r = acc(st, a, 2 * pr); dl = (next_write(kind, 0, a, 2 * pr) or stage_start[23]) - 3; cs = []
                for i in range(4):
                    e = lastw[(kind, 0, a, 2 * pr + (i >> 1))] + LAT + 4
                    mu = [sc.task(f"v_mul_f32 {V(r+2*i+k)}, {S(sSCA)}, {V(r+2*i+k)}", "v", earliest=e, prio=6) for k in range(2)] if kind == "A" else []
                    cs.append(sc.task(f"v_cvt_pk_bf16_f32 {V(r+i)}, {V(r+2*i)}, {V(r+2*i+1)}", "v", deps=mu + cs[-1:], earliest=e, prio=6))
                qst.append(sc.task(f"buffer_store_dwordx4 {V(r,4)}, {V(vST+2*bi+a)}, {S(sWS if bi == 0 else sWSB,4)}, {S((sSTA, sSTB)[bi]+pr)} offen {cfg['sc']}", "m",
                                   deps=cs + ([(qst[-1], 24)] if qst else []), deadline=dl, prio=3, tag="qkvst"))
    upd = {}; lastread = {}
    for gi, G in enumerate(groups):
        si = G["si"]; kind = STAGES[si][0]
        firstgrp = gi == 0 or groups[gi - 1]["si"] != si
        if firstgrp and si > 0:
            e = groups[gi - 2]["start"] + 2; dl = groups[gi - 1]["start"]
            U = []
            if kind == "H":
                if STAGES[si][2] == 1: U.append(sc.task(f"v_add_u32 {V(vTRH)}, {SLOT}, {V(vTRH)}", "v", deps=lastread[si - 1], earliest=e, deadline=dl, prio=1))
            elif kind == "D" and STAGES[si][1] == 0:
                t0 = None
                for txt in (f"v_lshrrev_b32 {V(vTD[0])}, 2, v0", f"v_bfe_u32 {V(vTD[1])}, v0, 3, 2", f"v_and_b32 {V(vTD[2])}, 3, v0",
                            f"v_lshlrev_b32 {V(vTD[0])}, 7, {V(vTD[0])}", f"v_lshl_add_u32 {V(vTD[0])}, {V(vTD[1])}, 5, {V(vTD[0])}",
                            f"v_lshl_add_u32 {V(vTD[0])}, {V(vTD[2])}, 3, {V(vTD[0])}", f"v_xor_b32 {V(vTD[0])}, {S(sT2)}, {V(vTD[0])}",
                            f"v_add_u32 {V(vTD[4])}, {SLOTOF[si]*SLOT}, {V(vTD[0])}", f"v_xor_b32 {V(vTD[5])}, 32, {V(vTD[4])}",
                            f"v_add_u32 {V(vTD[0])}, {S(sXO)}, {V(vTD[4])}", f"v_add_u32 {V(vTD[1])}, {S(sXO)}, {V(vTD[5])}",
                            f"v_add_u32 {V(vTD[2])}, {S(sXO+1)}, {V(vTD[4])}", f"v_add_u32 {V(vTD[3])}, {S(sXO+1)}, {V(vTD[5])}"):
                    t0 = sc.task(txt, "v", deps=[t0] + qst[:4], earliest=stage_start[12], deadline=dl, prio=8); U.append(t0)
                U.append(sc.task(f"v_lshlrev_b32 {V(vPS)}, 4, v0", "v", earliest=stage_start[20], deadline=dl, prio=8))
            else:
                prev = si - 1 if STAGES[si - 1][0] != "H" else si - 3
                d = (SLOTOF[si] - SLOTOF[prev]) * SLOT
                for r in (vTD if kind == "D" else (vTR0, vTR1)):
                    U.append(sc.task(f"v_add_u32 {V(r)}, {d & 0xffffffff}, {V(r)}", "v", deps=lastread[prev], earliest=e, deadline=dl, prio=1))
            upd[si] = U
        if gi == 0:
            for fi, (a, ks) in enumerate(G["frags"]):
                r = G["buf"][fi]
                for t in (0, 1): pre(trread(si, a, ks, t, V(r + 2 * t, 2)), tag=f"f{gi}_{fi}")
            for ks in range(3):
                for fh2 in (0, 1): pre(eread(ks, fh2, 1), tag=f"e1_{ks}")
            pre("WAIT lg:f0_2")
            sc.task("WAIT lg:e1_2", "s", earliest=5, deadline=5, prio=0)
            continue
        e0 = groups[gi - 1]["start"]
        if firstgrp: e0 = bar[si - 1].earliest + 1
        prevt = None
        for fi, (a, ks) in enumerate(G["frags"]):
            r = G["buf"][fi]
            for t in (0, 1):
                j = 2 * fi + t
                dl = G["start"] - 8 + j
                deps = ([(prevt, 0)] if prevt else []) + upd.get(si, [])
                if firstgrp: deps.append(bar[si - 1])
                prevt = sc.task(trread(si, a, ks, t, V(r + 2 * t, 2)), "m", deps=deps, earliest=e0, deadline=max(dl, e0), prio=3, tag=f"f{gi}_{fi}")
                lastread[si] = [prevt]
        for f in range(3):
            g = G["fuse"][f] - 1
            if g == bar.get(si, bar[0]).earliest: continue
            sc.task(f"WAIT lg:f{gi}_{f}", "s", earliest=g, deadline=g, prio=0)
    prevt = None
    for ks in range(3, 18):
        use = groups[ks // 3]["start"] + 6 + ks % 3 if ks < 9 else bar[0].earliest
        for fh2 in (0, 1):
            prevt = sc.task(eread(ks, fh2, 1), "m", deps=[(prevt, 0)] if prevt else [], earliest=0, deadline=min(use - 5, 4 + (2 * (ks - 3) + fh2) * 52 // 30), prio=2, tag=f"e1_{ks}")
        if ks < 9: sc.task(f"WAIT lg:e1_{ks}", "s", earliest=use - 1, deadline=use - 1, prio=0)
    free = {}
    for si in range(2, nst):
        pv = [j for j in range(si) if SLOTOF[j] == SLOTOF[si]]
        free[si] = pv[-1] if pv else 0
        if si == 25: free[si] = 21
    prevd = None; tnext = 0.0
    fast = cfg.get("dfast", 55) / 10; even = cfg.get("deven", 73) / 10
    for si in range(2, nst):
        e0 = bar[free[si]].earliest + 1
        for i, (sb, c, m0c, vo, sr, isH) in enumerate(dma_list(si)):
            tt_ = max(tnext, e0 + i * (even if si > 2 else 0)); e = int(tt_)
            tnext = tt_ + (fast * 2 if isH else fast)
            assert e + 24 < bar[si - 1].earliest, (si, i, e)
            t1 = sc.task(f"s_add_u32 {S(sSO)}, {S(sb)}, {c}", "s", deps=[prevd], earliest=e - 6, prio=3)
            t2 = sc.task(f"s_add_u32 m0, {S(sT3 if isH else sLW)}, {m0c}", "s", deps=[prevd], earliest=e - 6, prio=3)
            prevd = sc.task(f"buffer_load_dwordx4 {V(vo)}, {S(sr,4)}, {S(sSO)} offen {cfg.get('wpol','')} lds", "m", deps=[t1, t2, bar[free[si]]], earliest=e, deadline=e + 8, prio=2, tag=f"st{si}")
    pre(f"""
    s_lshr_b32 {S(sT0)}, {S(sWV)}, 1
    s_mul_i32 {S(sT0)}, {S(sT0)}, 18432
    s_and_b32 {S(sT2)}, {S(sWV)}, 1
    s_lshl_b32 {S(sT3)}, {S(sT2)}, 10
    s_add_u32 {S(sT3)}, {S(sT3)}, {S(sT0)}
    s_lshl_b32 {S(sXO)}, {S(sT2)}, 12
    s_xor_b32 {S(sXO+1)}, {S(sXO)}, 4096
    s_lshl_b32 {S(sT2)}, {S(sT2)}, 6
    v_mov_b32 {V(vC0)}, {S(sC0)}
    """)
    if cfg.get("touch", 1):
        last = None; tl = cfg.get("tlead", 7); tq = None
        for b in (-1, 2, 3):
            e = stage_start[sidx[("G", b, 0) if b >= 0 else ("H", 0, 0)] - tl] + 20
            last = sc.task(touch_gu(b, cfg)[0].text, "m", earliest=e, deadline=e + 12, prio=2, tag="touch")
        nm = 32 // cfg.get("ns", 4); per = 2592 // nm // 4 + (1 if 2592 // nm % 4 else 0)
        t = sc.task(f"s_and_b32 {S(sXO+2)}, {S(sM)}, {nm-1}", "s", earliest=4, prio=7)
        t = sc.task(f"s_lshl_b32 {S(sXO+2)}, {S(sXO+2)}, 2", "s", deps=[t], prio=7)
        t = sc.task(f"s_add_u32 {S(sXO+2)}, {S(sXO+2)}, {S(sWV)}", "s", deps=[t], prio=7)
        t = sc.task(f"s_mul_i32 {S(sXO+2)}, {S(sXO+2)}, {per*128}", "s", deps=[t], prio=7)
        t = sc.task(f"s_mul_i32 {S(sXO+3)}, {S(sS)}, {288*1152}", "s", deps=[t, tq], prio=7)
        t = sc.task(f"s_add_u32 {S(sXO+2)}, {S(sXO+2)}, {S(sXO+3)}", "s", deps=[t], prio=7)
        nins = (per + 63) // 64; sub = (per + nins - 1) // nins
        t = sc.task(f"v_min_u32 {V(vTG)}, {sub-1}, v0", "v", deps=[t, last], prio=4)
        t = sc.task(f"v_lshl_add_u32 {V(vTG)}, {V(vTG)}, 7, {S(sXO+2)}", "v", deps=[t], prio=4)
        for i in range(nins):
            e = stage_start[cfg.get("tdst", 12) + i] + 20
            if i: t = sc.task(f"v_add_u32 {V(vTG)}, {sub*128}, {V(vTG)}", "v", deps=[t], prio=4)
            t = sc.task(f"buffer_load_dword {V(vSINK)}, {V(vTG)}, {S(sWD,4)}, 0 offen {cfg.get('tpol','')}", "m", deps=[t], earliest=e, deadline=e + 12, prio=2, tag="touch")
    tlast = [None] * NGT; ne = [0]
    def gelu(g, e):
        k = ne[0] % NGT; T = vGT + k; ne[0] += 1
        t = sc.task(f"v_mul_f32 {V(T)}, {V(g)}, {V(g)}", "v", deps=[tlast[k]], earliest=e, prio=5)
        t = sc.task(f"v_fma_f32 {V(T)}, {V(T)}, {S(sC1)}, {V(vC0)}", "v", deps=[t], prio=5)
        t = sc.task(f"v_mul_f32 {V(T)}, {V(T)}, {V(g)}", "v", deps=[t], prio=5)
        t = sc.task(f"v_exp_f32 {V(T)}, {V(T)}", "t", deps=[t], prio=4)
        t = sc.task(f"v_add_f32 {V(T)}, 1.0, {V(T)}", "v", deps=[t], prio=5)
        t = sc.task(f"v_rcp_f32 {V(T)}, {V(T)}", "t", deps=[t], prio=4)
        t = sc.task(f"v_mul_f32 {V(g)}, {V(g)}, {V(T)}", "v", deps=[t], prio=5)
        tlast[k] = t; return t
    D0 = stage_start[sidx[("D", 0, 0)]]
    gx = D0 + 48 - cfg.get("xlead", 16)
    wx = sc.task("WAIT lg:xw3", "s", earliest=gx, deadline=gx, prio=0)
    barx = sc.task("s_barrier", "s", deps=[wx], earliest=gx, deadline=gx, prio=0)
    REG = [SLOT, 0, 16384, SLOT]
    hw = {}
    def half():
        wbar = bar[sidx[("G", 2, 1)]]; st = setof[("H", 0)]; W = []
        for tt in range(4):
            g = acc(st, 0, tt); u = acc(st, 1, tt)
            ge = [gelu(g + i, lastw[("H", 0, 0, tt)] + LAT) for i in range(4)]
            mu = [sc.task(f"v_mul_f32 {V(u+i)}, {V(u+i)}, {V(g+i)}", "v", deps=[ge[i]], earliest=lastw[("H", 0, 1, tt)] + LAT, prio=5) for i in range(4)]
            c = [sc.task(f"v_cvt_pk_bf16_f32 {V(g+i)}, {V(u+2*i)}, {V(u+2*i+1)}", "v", deps=mu, prio=5) for i in range(2)]
            W.append(sc.task(f"ds_write_b64 {V(vXW)}, {V(g,2)} offset:{SLOT+1024*tt}", "m", deps=c, deadline=wbar.earliest - 4, prio=3, tag="xwH", cost=8))
        hw["fix"] = sc.task(f"v_add_u32 {V(vXW)}, {S(sXFIX)}, {V(vXW)}", "v", deps=W, prio=5)
        e = stage_start[sidx[("U", 2, 0)]]
        R = [sc.task(f"ds_read_b128 {V(vHH+4*tt,4)}, {V(vXR)} offset:{SLOT+1024*tt}", "m", deps=[wbar], earliest=e + 8 + 12 * tt, deadline=e + 10 + 12 * tt, prio=3, tag="xrH") for tt in range(4)]
        hw["fix2"] = sc.task(f"v_add_u32 {V(vXR)}, {S(sXF2)}, {V(vXR)}", "v", deps=R, prio=5)
    cvs = {}
    for b in range(4):
        sg, su = setof[("G", b)], setof[("U", b)]; ge = {}; cv = {}
        for a in (0, 1):
            for tt in range(4):
                for i in range(4): ge[(a, tt, i)] = gelu(acc(sg, a, tt) + i, lastw[("G", b, a, tt)] + LAT)
        for a in (0, 1):
            for tt in range(4):
                g = acc(sg, a, tt); u = acc(su, a, tt); h = vH + 16 * b + 4 * tt
                mu = [sc.task(f"v_mul_f32 {V(u+i)}, {V(u+i)}, {V(g+i)}", "v", deps=[ge[(a, tt, i)]], earliest=lastw[("U", b, a, tt)] + LAT, deadline=next_write("G", b, a, tt) - 1, prio=5) for i in range(4)]
                cv[(a, tt)] = [sc.task(f"v_cvt_pk_bf16_f32 {V(h+2*a+i)}, {V(u+2*i)}, {V(u+2*i+1)}", "v", deps=mu[2*i:2*i+2], deadline=next_write("U", b, a, tt) - 1, prio=5) for i in range(2)]
        cvs[b] = cv
        if b == 1: half()
    okbar = [bar[sidx[("G", 3, 0)]], bar[19], bar[19], bar[21]]
    pw = None
    for b in range(4):
        cv = cvs[b]
        for tt in range(4):
            dl = (bar[20].earliest - 4 - 6 * (11 - 4 * b - tt)) if b < 3 else gx - 4 - 4 * (3 - tt)
            pw = sc.task(f"ds_write_b128 {V(vXW)}, {V(vH+16*b+4*tt,4)} offset:{REG[b]+1024*tt}", "m", deps=cv[(0, tt)] + cv[(1, tt)] + [hw["fix"], okbar[b]] + ([(pw, 4)] if pw else []), deadline=dl, prio=4, tag=f"xw{b}", cost=8)
        for tt in range(4):
            if b < 3: e = stage_start[21] + 1; dl = e + 8 + 4 * (4 * b + tt); dep = bar[20]
            else: e = gx + 1; dl = gx + 6 + 2 * tt; dep = barx
            sc.task(f"ds_read_b128 {A(aHP+16*b+4*tt,4)}, {V(vXR)} offset:{REG[b]+1024*tt}", "m", deps=[dep, hw["fix2"]], earliest=e, deadline=dl, prio=6, tag=f"xr{b}")
    sc.task("WAIT lg:xr3", "s", earliest=D0 + 49, deadline=D0 + 49, prio=0)
    lastst = None; n = 0; sp1 = cfg.get("psp1", 36); sp2 = cfg.get("psp2", 12); tst = stage_start[23]; late = []; parked = {}
    for j in range(9):
        st = setof[("D", j)]
        for a in (0, 1):
            for pr in (0, 1):
                r = acc(st, a, 2 * pr); cs = []; ws_ = []; nw = next_write("D", j, a, 2 * pr)
                for i in range(4):
                    cs.append(sc.task(f"v_cvt_pk_bf16_f32 {V(r+i)}, {V(r+2*i)}, {V(r+2*i+1)}", "v", deps=cs[-1:], earliest=lastw[("D", j, a, 2 * pr + (i >> 1))] + LAT + 4, prio=6))
                    ws_.append(sc.task(f"v_accvgpr_write_b32 {A(aPK+4*n+i)}, {V(r+i)}", "v", deps=[cs[-1]], deadline=nw - 2 if nw else None, prio=7))
                parked.setdefault(j, []).extend(ws_)
                so = f"s_add_u32 {S(sT0)}, {S(sPB1 if pr else sPB)}, {(4*j + a)*16384}"
                stt = f"buffer_store_dwordx4 {A(aPK+4*n,4)}, {V(vPS)}, {S(sWS,4)}, {S(sT0)} offen {cfg.get('psc', cfg['sc'])}"
                if tst < NG - cfg.get("pstop", 4):
                    t1 = sc.task(so, "s", deps=[lastst], earliest=tst - 6, prio=6)
                    lastst = sc.task(stt, "m", deps=ws_ + [t1], earliest=tst, prio=3, tag="pst")
                    tst += sp1 if tst < prevd.earliest else sp2
                else: late.append((so, stt))
                n += 1
    if hook: hook(sc, dict(bar=bar, stage_start=stage_start, qst=qst, NG=NG, parked=parked))
    out, left = sc.run(verbose=cfg.get("verbose"))
    print(f"k1: {NG} mfma, over budget {sc.over} cycles, leftover {len(left)}")
    res = []; mi = -1
    for ins in out:
        if ins.kind == "mfma":
            mi += 1
            if mi == stage_start[20]: res.append(Ins("MARK_B0:"))
            if mi == stage_start[22]: res.append(Ins("MARK_B1:"))
        res.append(ins)
    return pre.items + res + [Ins(t.text, t.tag) for t in left], late

def expand_B(out):
    i0 = next(i for i, x in enumerate(out) if x.text == "MARK_B0:"); i1 = next(i for i, x in enumerate(out) if x.text == "MARK_B1:")
    seg = out[i0 + 1:i1]; sw = []
    for x in seg:
        if x.kind == "mfma": sw.append(Ins(f"{x.op} {x.ops[0]}, {x.ops[2]}, {x.ops[1]}, {x.ops[3]}"))
        else: sw.append(x)
    return (out[:i0] + [Ins(f"s_cmp_eq_u32 {S(sISV)}, 0"), Ins("s_cbranch_scc1 L_Bqk")] + sw + [Ins("L_Bdone:")] + out[i1 + 1:],
            [Ins("L_Bqk:")] + seg + [Ins("s_branch L_Bdone")])

def build(cfg, hook=None, pre=None):
    p = Prog()
    stamp(p, 0, cfg)
    setup(p, cfg); setup2(p, cfg); setup3(p, cfg)
    if pre: pre(p)
    stamp(p, 1, cfg)
    layernorm(p, cfg)
    stamp(p, 2, cfg)
    items, late = mainpart(cfg, hook)
    p.extend(items)
    print("late partial stores:", len(late))
    if not cfg.get("fused"):
        stamp(p, 3, cfg)
        for so, stt in late: p(so); p(stt, "pst")
    return p, late
```

```python
from common import *

vKM, vKT, vVA, vIDX = 1, 2, 3, 4
vQM, vQT = 8, 24
vK, vV, vT = 28, 44, 76
vS = 80
vO = 144
vOMA, vOTA, vCW, vCR = 208, 209, 210, 211
vTMP = 212
sKO, sVO, sCNT, sKO0, sVO0, sSLOW, sOMO, sOTO = 61, 62, 63, 64, 65, 66, 67, 68
LDS_C = 129024
LDS_F = LDS_C + 24576

def kload(p, slot, so, cfg):
    p(f"buffer_load_dwordx2 {V(vK+4*slot,2)}, {V(vKM)}, {S(sWS,4)}, {S(so)} offen {cfg['sc']}", tag=f"k{slot}")
    p(f"buffer_load_dwordx2 {V(vK+4*slot+2,2)}, {V(vKM)}, {S(sWS,4)}, {S(so)} offen offset:256 {cfg['sc']}", tag=f"k{slot}")

def setup(p, cfg):
    sc = cfg["sc"]
    p(f"""
    s_lshr_b32 {S(sT0)}, {S(sWV)}, 1
    s_and_b32 {S(sT1)}, {S(sWV)}, 1
    v_and_b32 v5, 31, v0
    v_lshrrev_b32 v6, 5, v0
    v_and_b32 {V(vTMP+6)}, 15, v0
    v_bfe_u32 {V(vTMP+7)}, v0, 4, 1
    v_lshl_add_u32 {V(vTMP+6)}, {V(vTMP+6)}, 1, {V(vTMP+7)}
    s_mul_i32 {S(sT2)}, {S(sT0)}, {5*256}
    v_lshlrev_b32 v7, 9, v6
    v_add_u32 v7, {S(sT2)}, v7
    v_lshl_add_u32 {V(vTMP)}, {V(vTMP+6)}, 3, v7
    s_lshl_b32 {S(sT2)}, {S(sT0)}, 2
    s_add_u32 {S(sT2)}, {S(sT2)}, 1024
    v_mul_u32_u24 {V(vTMP+1)}, {QK_T}, v6
    v_add_u32 {V(vTMP+1)}, {S(sT2)}, {V(vTMP+1)}
    v_lshl_add_u32 {V(vTMP+2)}, {V(vTMP+6)}, 3, {V(vTMP+1)}
    v_bfe_u32 {V(vTMP+3)}, v5, 2, 1
    v_and_or_b32 {V(vTMP+3)}, v5, 24, {V(vTMP+3)}
    v_and_b32 {V(vTMP+4)}, 3, v5
    v_lshl_add_u32 {V(vTMP+3)}, {V(vTMP+4)}, 1, {V(vTMP+3)}
    v_lshl_add_u32 {V(vKM)}, {V(vTMP+3)}, 3, v7
    v_lshl_add_u32 {V(vKT)}, {V(vTMP+3)}, 3, {V(vTMP+1)}
    ; V address
    v_mul_u32_u24 {V(vTMP+4)}, {VT_G}, v6
    v_cmp_eq_u32 vcc, 22, v5
    v_cndmask_b32 {V(vTMP+5)}, v5, 18, vcc
    v_lshl_add_u32 {V(vVA)}, {V(vTMP+5)}, 4, {V(vTMP+4)}
    v_cmp_lt_u32 vcc, 18, {V(vTMP+5)}
    v_mov_b32 {V(vTMP+4)}, 0x7fff0000
    v_cndmask_b32 {V(vVA)}, {V(vVA)}, {V(vTMP+4)}, vcc
    s_mul_i32 {S(sT2)}, {S(sS)}, {QK_PAIR}
    s_mul_i32 {S(sT3)}, {S(sT1)}, {32*QK_T}
    s_add_u32 {S(sKO0)}, {S(sT2)}, {S(sT3)}
    s_add_u32 {S(sKO0)}, {S(sKO0)}, {WS_QK+QK_SEC}
    s_lshl_b32 {S(sT3)}, {S(sS)}, 1
    s_add_u32 {S(sT3)}, {S(sT3)}, {S(sT0)}
    s_mul_i32 {S(sVO0)}, {S(sT3)}, {VT_HEAD}
    s_mul_i32 {S(sT3)}, {S(sT1)}, {32*VT_T}
    s_add_u32 {S(sVO0)}, {S(sVO0)}, {S(sT3)}
    s_add_u32 {S(sVO0)}, {S(sVO0)}, {WS_VT}
    v_bfe_u32 {V(vTMP+4)}, v0, 4, 1
    v_lshlrev_b32 {V(vTMP+4)}, 14, {V(vTMP+4)}
    v_lshl_add_u32 {V(vTMP+4)}, v6, 8, {V(vTMP+4)}
    v_and_b32 {V(vTMP+5)}, 15, v0
    v_lshl_add_u32 {V(vOMA)}, {V(vTMP+5)}, 4, {V(vTMP+4)}
    s_lshl_b32 {S(sOMO)}, {S(sM)}, 1
    s_add_u32 {S(sOMO)}, {S(sOMO)}, {S(sT1)}
    s_lshl_b32 {S(sOMO)}, {S(sOMO)}, 6
    s_add_u32 {S(sOMO)}, {S(sOMO)}, {S(sS)}
    s_lshl_b32 {S(sOMO)}, {S(sOMO)}, 1
    s_add_u32 {S(sOMO)}, {S(sOMO)}, {S(sT0)}
    s_lshl_b32 {S(sOMO)}, {S(sOMO)}, 9
    s_add_u32 {S(sOMO)}, {S(sOMO)}, {WS_OM}
    v_lshlrev_b32 {V(vOTA)}, 2, v5
    v_cmp_lt_u32 vcc, 31, v0
    v_mov_b32 {V(vTMP+4)}, 0x7fff0000
    v_cndmask_b32 {V(vOTA)}, {V(vOTA)}, {V(vTMP+4)}, vcc
    s_lshl_b32 {S(sOTO)}, {S(sM)}, 4
    s_add_u32 {S(sOTO)}, {S(sOTO)}, {S(sS)}
    s_lshl_b32 {S(sOTO)}, {S(sOTO)}, 2
    s_add_u32 {S(sOTO)}, {S(sOTO)}, {S(sWV)}
    s_lshl_b32 {S(sOTO)}, {S(sOTO)}, 8
    s_add_u32 {S(sOTO)}, {S(sOTO)}, {WS_OT}
    s_mul_i32 {S(sT3)}, {S(sWV)}, 6144
    s_add_u32 {S(sT3)}, {S(sT3)}, {LDS_C}
    v_lshl_add_u32 {V(vCW)}, v0, 4, {S(sT3)}
    s_xor_b32 {S(sT3)}, {S(sWV)}, 1
    s_mul_i32 {S(sT3)}, {S(sT3)}, 6144
    s_add_u32 {S(sT3)}, {S(sT3)}, {LDS_C}
    v_lshl_add_u32 {V(vCR)}, v0, 4, {S(sT3)}
    """)

def first_loads(p, cfg):
    sc = cfg["sc"]
    p(f"s_mul_i32 {S(sT2)}, {S(sS)}, {QK_PAIR}\ns_and_b32 {S(sT1)}, {S(sWV)}, 1")
    p(f"s_mov_b32 {S(sKO)}, {S(sKO0)}\ns_mov_b32 {S(sVO)}, {S(sVO0)}")
    for pp in (0, 1):
        p(f"""
        s_xor_b32 {S(sT3)}, {S(sT1)}, {pp}
        s_lshl_b32 {S(sT0)}, {S(sM)}, 1
        s_add_u32 {S(sT3)}, {S(sT3)}, {S(sT0)}
        s_mul_i32 {S(sT3)}, {S(sT3)}, {2*QK_T}
        s_add_u32 {S(sT3)}, {S(sT3)}, {S(sT2)}
        """)
        if WS_QK: p(f"s_add_u32 {S(sT3)}, {S(sT3)}, {WS_QK}")
        p(f"buffer_load_dword {V(vQT+2*pp)}, {V(vTMP+2)}, {S(sWS,4)}, {S(sT3)} offen {sc}")
        for j in (0, 1):
            for u in (0, 1):
                p(f"buffer_load_dwordx2 {V(vQM+8*pp+4*j+2*u,2)}, {V(vTMP)}, {S(sWS,4)}, {S(sT3)} offen offset:{QK_T*j+256*u} {sc}")
    p(f"buffer_load_dword {V(vT)}, {V(vKT)}, {S(sWS,4)}, {S(sKO)} offen {sc}", tag="k0")
    for t in range(4):
        kload(p, t, sKO, cfg)
        if t == 3:
            p(f"s_sub_u32 {S(sT0)}, {S(sKO)}, {QK_T}")
            p(f"buffer_load_dword {V(vT+2)}, {V(vKT)}, {S(sWS,4)}, {S(sT0)} offen {sc}", tag="k2")
        p(f"s_add_u32 {S(sKO)}, {S(sKO)}, {QK_T}")
        if t < 3:
            for i in (0, 1): p(f"buffer_load_dwordx4 {V(vV+8*t+4*i,4)}, {V(vVA)}, {S(sWS,4)}, {S(sVO)} offen offset:{640*i} {sc}", tag=f"v{t}")
            p(f"s_add_u32 {S(sVO)}, {S(sVO)}, {VT_T}")

def init_regs(p):
    p(f"v_mov_b32 {V(vIDX)}, 0xdddddddd")
    for r in (vT + 1, vT + 3): p(f"v_mov_b32 {V(r)}, 0x3f803f80")
    for r in (vQT + 1, vQT + 3): p(f"v_mov_b32 {V(r)}, 0")
    for r in list(range(vO, vO + 64)) + list(range(vV + 28, vV + 32)) + list(range(vS + 56, vS + 64)): p(f"v_mov_b32 {V(r)}, 0")

def Tm(Y, kt, qp): return f"v_mfma_f32_32x32x4_2b_bf16 {V(Y,32)}, {V(vT+2*((kt>>1)&1),2)}, {V(vQT+2*qp,2)}, 0 cbsz:1 abid:{kt&1}"
def Mm(Y, kt, qp, j): return f"v_mfma_f32_32x32x16_bf16 {V(Y+16*j,16)}, {V(vK+4*kt,4)}, {V(vQM+8*qp+4*j,4)}, {V(Y+16*j,16)}"
def PV(X, kt, qp, j, i): return f"v_smfmac_f32_32x32x32_bf16 {V(vO+32*qp+16*j,16)}, {V(vV+8*kt+4*i,4)}, {V(X+16*j+8*i,8)}, {V(vIDX)}"

def mainloop(p, cfg, extra=None):
    sc = cfg["sc"]
    p("WAIT vm:k0")
    p(Tm(vS, 0, 0)); p(Mm(vS, 0, 0, 0)); p(Mm(vS, 0, 0, 1))
    p(f"s_mov_b32 {S(sCNT)}, 8\ns_nop 11")
    b = Prog(); b("L_att:")
    for ps in range(8):
        X = vS + 32 * (ps & 1); Y = vS + 32 * ((ps + 1) & 1)
        kt, qp = ps >> 1, ps & 1; nk, nq = ((ps + 1) >> 1) & 3, (ps + 1) & 1; pk, pq = ((ps - 1) >> 1) & 3, (ps - 1) & 1
        ld = lambda w, d, a, so, off: f"buffer_load_dword{w} {d}, {V(a)}, {S(sWS,4)}, {S(so)} offen offset:{off} {sc}"
        after = {k: [] for k in range(7)}
        if qp == 0:
            after[0].append((ld("x4", V(vV + 8 * pk, 4), vVA, sVO, 0), f"v{pk}"))
            after[2].append((ld("x4", V(vV + 8 * pk + 4, 4), vVA, sVO, 640), f"v{pk}"))
            after[3].append((f"s_add_u32 {S(sVO)}, {S(sVO)}, {VT_T}", None))
            after[1].append((f"WAIT vm:v{kt}", None))
            after[6].append((f"WAIT vm:k{(kt+1)&3}", None))
        else:
            after[0].append((ld("x2", V(vK + 4 * kt, 2), vKM, sKO, 0), f"k{kt}"))
            after[2].append((ld("x2", V(vK + 4 * kt + 2, 2), vKM, sKO, 256), f"k{kt}"))
            if kt & 1:
                after[3].append((f"s_sub_u32 {S(sT0)}, {S(sKO)}, {QK_T}", None))
                after[4].append((ld("", V(vT + 2 * (kt >> 1)), vKT, sT0, 0), f"k{kt-1}"))
            after[5].append((f"s_add_u32 {S(sKO)}, {S(sKO)}, {QK_T}", None))
        if ps == 7:
            after[6].append((f"s_sub_u32 {S(sCNT)}, {S(sCNT)}, 1", None))
        if extra: extra(ps, after)
        mf = {2: PV(Y, pk, pq, 1, 1), 5: Tm(Y, nk, nq), 13: PV(X, kt, qp, 0, 0), 19: PV(X, kt, qp, 0, 1), 22: Mm(Y, nk, nq, 0), 25: Mm(Y, nk, nq, 1), 28: PV(X, kt, qp, 1, 0)}
        k = 0
        for e in range(32):
            if e in mf:
                b(mf[e])
                for t, tag in after[k]: b(t, tag)
                k += 1
            b(f"v_exp_f32 {V(X+e)}, {V(X+e)}")
    b(f"s_cmp_lg_u32 {S(sCNT)}, 0\ns_cbranch_scc1 L_att")
    p.add(Loop(b))
    p(PV(vS + 32, 3, 1, 1, 1))

def finish(p, cfg):
    sc = cfg["sc"]
    p("L_chk:")
    T = vTMP
    p(f"v_mov_b32 {V(T)}, 0\nv_mov_b32 {V(T+1)}, 0\nv_mov_b32 {V(T+2)}, 0\nv_mov_b32 {V(T+3)}, 0")
    for j in (2, 3):
        for i in range(3): p(f"ds_write_b128 {V(vCW)}, {V(vO+16*j+4*i,4)} offset:{1024*(3*(j-2)+i)}")
    for j in range(4):
        for i in range(5): p(f"v_pk_fma_f32 {V(T,2)}, {V(vO+16*j+2*i,2)}, {V(T+2,2)}, {V(T,2)}")
    p(f"""
    v_add_f32 {V(T)}, {V(T)}, {V(T+1)}
    v_min3_f32 {V(T+1)}, {V(vO+10)}, {V(vO+26)}, {V(vO+42)}
    v_min_f32 {V(T+1)}, {V(T+1)}, {V(vO+58)}
    v_add_f32 {V(T+2)}, {V(vO+10)}, {V(vO+26)}
    v_add_f32 {V(T+3)}, {V(vO+42)}, {V(vO+58)}
    v_add_f32 {V(T+2)}, {V(T+2)}, {V(T+3)}
    v_add_f32 {V(T+2)}, {V(T+2)}, {V(T)}
    v_cmp_ngt_f32 vcc, 0x53800000, {V(T+2)}
    s_mov_b64 s[70:71], vcc
    v_cmp_nlt_f32 vcc, 0x2b800000, {V(T+1)}
    s_or_b64 vcc, vcc, s[70:71]
    s_cselect_b32 {S(sT0)}, 1, 0
    v_mov_b32 {V(T)}, {S(sT0)}
    s_lshl_b32 {S(sT1)}, {S(sWV)}, 2
    s_add_u32 {S(sT1)}, {S(sT1)}, {LDS_F}
    v_mov_b32 {V(T+1)}, {S(sT1)}
    ds_write_b32 {V(T+1)}, {V(T)}
    v_mov_b32 {V(T+1)}, {LDS_F}
    s_waitcnt lgkmcnt(0)
    s_barrier
    ds_read_b128 {V(T+4,4)}, {V(T+1)}
    """)
    for j in (0, 1):
        for i in range(3): p(f"ds_read_b128 {V(T+8+12*j+4*i,4)}, {V(vCR)} offset:{1024*(3*j+i)}")
    p(f"""
    v_or_b32 {V(T+4)}, {V(T+4)}, {V(T+5)}
    v_or3_b32 {V(T+4)}, {V(T+4)}, {V(T+6)}, {V(T+7)}
    v_readfirstlane_b32 {S(sT0)}, {V(T+4)}
    s_andn2_b32 {S(sT0)}, {S(sT0)}, {S(sSLOW)}
    s_cbranch_scc1 L_slow
    """)
    for j in (0, 1):
        o = vO + 16 * j; q = T + 8 + 12 * j
        p(f"v_add_f32 {V(o+10)}, {V(o+10)}, {V(q+10)}\nv_rcp_f32 {V(o+10)}, {V(o+10)}")
        for i in range(5): p(f"v_pk_add_f32 {V(o+2*i,2)}, {V(o+2*i,2)}, {V(q+2*i,2)}")
        p(f"v_mov_b32 {V(o+11)}, {V(o+10)}")
        for i in range(5): p(f"v_pk_mul_f32 {V(o+2*i,2)}, {V(o+2*i,2)}, {V(o+10,2)}")
        for i in range(5): p(f"v_cvt_pk_bf16_f32 {V(o+i)}, {V(o+2*i)}, {V(o+2*i+1)}")
        if j: p(f"s_add_u32 {S(sOMO)}, {S(sOMO)}, 32768")
        p(f"buffer_store_dwordx4 {V(o,4)}, {V(vOMA)}, {S(sWS,4)}, {S(sOMO)} offen {sc}", tag="ost")
        p(f"buffer_store_dword {V(o+4)}, {V(vOTA)}, {S(sWS,4)}, {S(sOTO)} offen offset:{128*j} {sc}", tag="ost")

def slowpath(cfg):
    sc = cfg["sc"]; p = Prog(); MX = vTMP + 36
    p(f"L_slow:\ns_waitcnt vmcnt(0) lgkmcnt(0)\ns_barrier\ns_mov_b32 {S(sSLOW)}, 1")
    for j in range(4): p(f"v_mov_b32 {V(MX+j)}, 0xff800000")
    for r in range(vO, vO + 64): p(f"v_mov_b32 {V(r)}, 0")
    for ps in (0, 1):
        p(f"s_mov_b32 {S(sKO)}, {S(sKO0)}\ns_mov_b32 {S(sVO)}, {S(sVO0)}\ns_mov_b32 {S(sCNT)}, 32")
        b = Prog(); b(f"L_slow{ps}:")
        b(f"buffer_load_dword {V(vT)}, {V(vKT)}, {S(sWS,4)}, {S(sKO)} offen {sc}"); kload(b, 0, sKO, cfg)
        if ps:
            for i in (0, 1): b(f"buffer_load_dwordx4 {V(vV+4*i,4)}, {V(vVA)}, {S(sWS,4)}, {S(sVO)} offen offset:{640*i} {sc}")
        for qp in (0, 1): b(Tm(vS + 32 * qp, 0, qp))
        for qp in (0, 1):
            for j in (0, 1): b(Mm(vS + 32 * qp, 0, qp, j))
        for t in range(4):
            x = vS + 16 * t
            if ps == 0:
                for i in range(8): b(f"v_max3_f32 {V(MX+t)}, {V(x+2*i)}, {V(x+2*i+1)}, {V(MX+t)}")
            else:
                for i in range(16): b(f"v_sub_f32 {V(x+i)}, {V(x+i)}, {V(MX+t)}")
                for i in range(16): b(f"v_exp_f32 {V(x+i)}, {V(x+i)}")
                for i in (0, 1): b(PV(vS + 32 * (t >> 1), 0, t >> 1, t & 1, i))
        b(f"s_add_u32 {S(sKO)}, {S(sKO)}, {QK_T}\ns_add_u32 {S(sVO)}, {S(sVO)}, {VT_T}\ns_sub_u32 {S(sCNT)}, {S(sCNT)}, 1\ns_cmp_lg_u32 {S(sCNT)}, 0\ns_cbranch_scc1 L_slow{ps}")
        p.add(Loop(b))
        if ps == 0:
            p(f"ds_write_b128 {V(vCW)}, {V(MX,4)}\nv_xor_b32 {V(vTMP)}, 512, {V(vCW)}\nv_xor_b32 {V(vTMP+1)}, 512, {V(vCR)}\ns_waitcnt lgkmcnt(0)\ns_barrier")
            p(f"ds_read_b128 {V(vTMP+4,4)}, {V(vTMP)}\nds_read_b128 {V(vTMP+8,4)}, {V(vCR)}\nds_read_b128 {V(vTMP+12,4)}, {V(vTMP+1)}")
            for j in range(4):
                p(f"v_max_f32 {V(MX+j)}, {V(MX+j)}, {V(vTMP+4+j)}\nv_max3_f32 {V(MX+j)}, {V(MX+j)}, {V(vTMP+8+(j^2))}, {V(vTMP+12+(j^2))}")
            p("s_barrier")
    p("s_nop 15\ns_branch L_chk")
    out, st, stats = finalize(p.items)
    return out

def build(p, cfg):
    stamp(p, 0, cfg)
    setup(p, cfg); first_loads(p, cfg); init_regs(p)
    p(f"s_mov_b32 {S(sSLOW)}, 0")
    stamp(p, 1, cfg)
    mainloop(p, cfg)
    stamp(p, 2, cfg)
    finish(p, cfg)
    return slowpath(cfg)
```

```python
from asmfw import Ins

class Task:
    __slots__ = ("text", "typ", "deps", "earliest", "deadline", "prio", "gap", "tag", "cost", "seq", "multi")
    _n = 0
    def __init__(self, text, typ, deps=(), earliest=0, deadline=None, prio=5, tag=None, cost=None):
        self.text = text; self.typ = typ; self.deps = [d for d in deps if d is not None]
        self.earliest = earliest; self.deadline = deadline; self.prio = prio; self.tag = tag
        self.gap = None; self.cost = cost if cost is not None else (8 if typ == "t" else 4)
        self.multi = False
        Task._n += 1; self.seq = Task._n

class Sched:
    def __init__(self, budget=8):
        self.mf = []; self.tasks = []; self.fixed = {}; self.budget = budget; self.gapbudget = {}; self.vmexcl = True
    def mfma(self, text, budget=None):
        self.mf.append(text)
        if budget is not None: self.gapbudget[len(self.mf) - 1] = budget
        return len(self.mf) - 1
    def task(self, *a, **k):
        t = Task(*a, **k); self.tasks.append(t); return t
    def run(self, maxds=1, verbose=False):
        n = len(self.mf)
        pend = list(self.tasks)
        gaps = [dict(s=[], m=[], v=[]) for _ in range(n)]
        over = 0
        def ready(t, g):
            if t.earliest > g: return False
            for d in t.deps:
                dist = 1
                if isinstance(d, tuple): d, dist = d
                if d.gap is None: return False
                if dist == 1 and d.typ == "v" and t.typ in ("v", "t"): dist = 0
                if dist == 1 and d.typ == "s" and t.typ == "s": dist = 0
                if d.gap + dist > g: return False
            return True
        def used(G):
            partial = 4 * max(0, len(G["s"]) - 1) + sum(t.cost for t in G["m"]) + sum(t.cost for t in G["v"])
            nvm = sum(1 for t in G["m"] if t.text.startswith("buffer_"))
            if nvm: partial += 4 * nvm + (4 if G["s"] and len(G["m"]) == nvm else 0)
            if sum(1 for t in G["m"] if t.text.startswith("ds_read")) > 1: partial += 4
            return partial
        def place(t, g):
            t.gap = g; gaps[g]["s" if t.typ == "s" else ("m" if t.typ == "m" else "v")].append(t)
        def force(t, g):
            for d in t.deps:
                if isinstance(d, tuple): d = d[0]
                if d.gap is None: force(d, g)
            assert t.earliest <= g, f"deadline before earliest: {t.text} g={g} earliest={t.earliest}"
            t.gap = g; gaps[g].setdefault("x", []).append(t)
        for g in range(n):
            G = gaps[g]; B = self.gapbudget.get(g, self.budget)
            pend.sort(key=lambda t: (0 if (t.deadline is not None and t.deadline <= g) else 1, t.prio, t.deadline if t.deadline is not None else 1 << 30, t.seq))
            progress = True
            while progress:
                progress = False
                for t in pend:
                    if t.gap is not None or not ready(t, g): continue
                    urgent = t.deadline is not None and t.deadline <= g
                    isvm = t.text.startswith("buffer_")
                    if G.get("excl") and not urgent: continue
                    if isvm and self.vmexcl and not urgent:
                        if G["s"] or G["m"] or G["v"]: continue
                        if any(o.gap is None and o.deadline is not None and o.deadline <= g and o is not t for o in pend): continue
                        place(t, g); G["excl"] = True; progress = True; break
                    if t.typ == "s":
                        if len(G["s"]) >= 1 and not urgent and not (t.multi and used(G) + 4 <= B): continue
                    elif t.typ == "m":
                        isds = t.text.startswith("ds_read")
                        if isds and sum(1 for x in G["m"] if x.text.startswith("ds_read")) >= maxds and not (t.deadline is not None and t.deadline <= g + 1): continue
                        if used(G) + t.cost > B and not urgent: continue
                    else:
                        if used(G) + t.cost > B and not urgent: continue
                    place(t, g); progress = True
                    break
            for t in pend:
                if t.gap is None and t.deadline is not None and t.deadline <= g: force(t, g)
            pend = [t for t in pend if t.gap is None]
            u = used(G) + sum(t.cost for t in G.get("x", []))
            if u > B:
                over += u - B
                if verbose: print(f"   gap {g}: over by {u-B}")
        if verbose:
            for s0 in range(0, n, 72):
                pat = ""
                for g in range(s0, min(n, s0 + 72)):
                    G = gaps[g]; q = "".join("s" for t in G["s"])
                    for t in G["m"]: q += "L" if t.text.startswith("buffer_load") else "S" if t.text.startswith("buffer_st") else "W" if t.text.startswith("ds_w") else "d"
                    for t in G["v"]: q += "e" if t.typ == "t" else "v"
                    q += "x" * len(G.get("x", []))
                    pat += q + " "
                print(f"st{s0//72}: free {sum(max(0, self.gapbudget.get(g, self.budget) - used(gaps[g])) for g in range(s0, min(n, s0+72)))//4}: {pat}")
        out = []
        for g in range(n):
            out.append(Ins(self.mf[g]))
            for k in ("s", "m", "v", "x"):
                for t in gaps[g].get(k, []): out += [Ins(x, t.tag) for x in t.text.split("\n")]
        left = sorted(pend, key=lambda t: t.seq)
        self.gapstart = None
        self.gaps = gaps; self.over = over
        return out, left
```

```python
import sys, importlib
from common import *
import k1

NAME = "parallel_sum__mha_block__glu_gated_geglu__prompt"
def dump_stamps(p, cfg, kidx):
    if not cfg.get("stamps"): return
    p("s_memtime s[98:99]\ns_memrealtime s[100:101]\ns_waitcnt lgkmcnt(0)")
    p(f"s_lshl_b32 {S(sT0)}, s2, 2\ns_add_u32 {S(sT0)}, {S(sT0)}, {S(sWV)}\ns_lshl_b32 {S(sT0)}, {S(sT0)}, 8\ns_add_u32 {S(sT0)}, {S(sT0)}, {WS_TS + kidx*262144}")
    for i in (4, 5, 7, 8): p(f"v_writelane_b32 v255, s{84+2*i}, {i}")
    p(f"v_lshlrev_b32 v1, 2, v0\nbuffer_store_dword v255, v1, {S(sWS,4)}, {S(sT0)} offen")

def kernel(name, items, extra=()):
    return f".globl {name}\n.p2align 8\n.type {name},@function\n{name}:\n" + text_of(items) + text_of(list(extra)) + f"L_{name[:2]}_last:\n"

def build_fused(cfg):
    import att
    cfg["sc"] = "sc1"
    p = Prog(); prologue(p, "L_end", cfg, ("L_pc", "L_last") if cfg.get("cpf", 1) else None)
    q, late = k1.build(cfg, att.hook(cfg), att.clear_flags)
    p.extend(q); stamp(p, 3, cfg)
    att.attention(p, cfg, late); att.finish(p, cfg); stamp(p, 56, cfg); att.tail(p, cfg)
    dump_stamps(p, cfg, 0)
    out, st, stats = finalize(p.items, verbose="f" if cfg.get("verbose") else None)
    out, tail = k1.expand_B(out)
    n = NAME + "_kernel"
    s = f"; @launch grid=(256,1,1) block=(256,1,1) lds={LDS_BYTES}\n"
    s += '.amdgcn_target "amdgcn-amd-amdhsa--gfx950"\n.text\n'
    s += f".globl {n}\n.p2align 8\n.type {n},@function\n{n}:\n" + text_of(out + [Ins("L_end:"), Ins("s_endpgm")] + tail + att.outofline(cfg)) + "L_last:\n"
    s += '.section .rodata,"a"\n.p2align 6\n' + kdesc(n)
    return s

def build(cfg):
    if cfg.get("fused"): return build_fused(cfg)
    ks = []; launches = []
    p = Prog(); prologue(p, "L_k1_end", cfg, ("L_k1_pc", "L_k1_last") if cfg.get("cpf", 1) else None); p.extend(k1.build(cfg)[0]); dump_stamps(p, cfg, 0)
    out, st, stats = finalize(p.items, verbose="k1" if cfg.get("verbose") else None)
    out, tail = k1.expand_B(out)
    ks.append(("k1_kernel", out + [Ins("L_k1_end:"), Ins("s_endpgm")], tail))
    if cfg.get("upto", 3) >= 2:
        import k2
        p = Prog(); prologue(p, "L_k2_end", cfg, ("L_k2_pc", "L_k2_last") if cfg.get("cpf", 1) else None); extra = k2.build(p, cfg); dump_stamps(p, cfg, 1)
        out, st, stats = finalize(p.items, verbose="k2" if cfg.get("verbose") else None)
        ks.append(("k2_kernel", out + [Ins("L_k2_end:"), Ins("s_endpgm")], extra))
    if cfg.get("upto", 3) >= 3:
        import k3
        p = Prog(); prologue(p, "L_k3_end", cfg, ("L_k3_pc", "L_k3_last") if cfg.get("cpf", 1) else None); k3.build(p, cfg); dump_stamps(p, cfg, 2)
        out, st, stats = finalize(p.items, verbose="k3" if cfg.get("verbose") else None)
        ks.append(("k3_kernel", out + [Ins("L_k3_end:"), Ins("s_endpgm")], []))
    for i in range(cfg.get("empty", 0)): ks.append((f"e{i}_kernel", [Ins("s_endpgm")], []))
    s = "".join(f"; @launch kernel={n} grid=(256,1,1) block=(256,1,1) lds={LDS_BYTES}\n" for n, _, _ in ks)
    s += '.amdgcn_target "amdgcn-amd-amdhsa--gfx950"\n.text\n'
    for n, it, ex in ks: s += kernel(n, it, ex)
    s += '.section .rodata,"a"\n'
    for n, _, _ in ks: s += ".p2align 6\n" + kdesc(n)
    return s

if __name__ == "__main__":
    cfg = dict(sc="")
    out = sys.argv[1]
    for a in sys.argv[2:]:
        k, v = a.split("=", 1); cfg[k] = int(v) if v.lstrip("-").isdigit() else v
    open(out, "w").write(build(cfg))
```
